```python
import torch

def _softmax(x, axis=-1):
    return torch.softmax(x, dim=axis)

def _gelu(x):
    return torch.nn.functional.gelu(x, approximate='tanh')

def _silu(x):
    return torch.nn.functional.silu(x)

def _sigmoid(x):
    return torch.sigmoid(x)

def _layernorm(x, axis=-1, eps=1e-05):
    m = x.mean(dim=axis, keepdim=True)
    v = x.var(dim=axis, keepdim=True, unbiased=False)
    return (x - m) / torch.sqrt(v + eps)

def _scatter_add(tgt, idx, src, axis=0):
    return tgt.clone().index_add_(axis, idx, src)

def _segment_sum(src, seg, n):
    out = torch.zeros((n,) + src.shape[1:], dtype=src.dtype)
    return out.index_add_(0, seg, src)

def _pad(x, pw):
    flat = tuple((v for pair in reversed(pw) for v in pair))
    return torch.nn.functional.pad(x, flat)
kernel_name = 'adaLN_cond__memory_aug_recurrent_mem_tr__geglu_ffn__prompt'

def setup_inputs():

    _w = lambda a: (lambda t: t.to(torch.bfloat16) if t.is_floating_point() else t)(torch.as_tensor(a))

    def _A_setup():
        B, S, Dm = (1, 2048, 512)
        H, Dh = (32, 128)
        M, seg = (8, 32)
        seg = min(seg, S)
        S = S // seg * seg
        return {'x': _w((lambda *s: torch.randn(*s, dtype=torch.bfloat16) * 0.05)(B, S, Dm)), 'mem0': _w((lambda *s: torch.randn(*s, dtype=torch.bfloat16) * 0.4)(B, M, Dm)), 'Wq': _w((lambda *s: torch.randn(*s, dtype=torch.bfloat16) * 3.2)(Dm, H, Dh) * Dm ** (-0.5)), 'Wk': _w((lambda *s: torch.randn(*s, dtype=torch.bfloat16) * 3.2)(Dm, H, Dh) * Dm ** (-0.5)), 'Wv': _w((lambda *s: torch.randn(*s, dtype=torch.bfloat16) * 0.4)(Dm, H, Dh) * Dm ** (-0.5)), 'Wo': _w((lambda *s: torch.randn(*s, dtype=torch.bfloat16) * 0.4)(H, Dh, Dm) * (H * Dh) ** (-0.5)), 'seg_len': seg}
    _A_in = _A_setup()

    def _B_setup():
        B, S, D, F = (1, 2048, 512, 1376)
        return {'x': _w((lambda *s: torch.randn(*s, dtype=torch.bfloat16) * 0.05)(B, S, D)), 'w_gate': _w((lambda *s: torch.randn(*s, dtype=torch.bfloat16) * 0.05)(D, F)), 'w_up': _w((lambda *s: torch.randn(*s, dtype=torch.bfloat16) * 0.05)(D, F)), 'w_down': _w((lambda *s: torch.randn(*s, dtype=torch.bfloat16) * 0.05)(F, D))}
    _B_in = _B_setup()
    return {'A_x': _A_in['x'], 'A_mem0': _A_in['mem0'], 'A_Wq': _A_in['Wq'], 'A_Wk': _A_in['Wk'], 'A_Wv': _A_in['Wv'], 'A_Wo': _A_in['Wo'], 'A_seg_len': _A_in['seg_len'], 'B_x': _B_in['x'], 'B_w_gate': _B_in['w_gate'], 'B_w_up': _B_in['w_up'], 'B_w_down': _B_in['w_down'], 'c': _w((lambda *s: torch.randn(*s, dtype=torch.bfloat16) * 0.1)(1, 512) * 8.0), 'w_mod': _w((lambda *s: torch.randn(*s, dtype=torch.bfloat16) * 0.1)(512, 6 * 512) * 512 ** (-0.5) * 8.0)}

def reference(A_x, A_mem0, A_Wq, A_Wk, A_Wv, A_Wo, A_seg_len, B_x, B_w_gate, B_w_up, B_w_down, c, w_mod):

    def _A_ref(x, mem0, Wq, Wk, Wv, Wo, seg_len):
        B, S, Dm = x.shape
        H, Dh = (Wq.shape[1], Wq.shape[2])
        M = mem0.shape[1]
        scale = Dh ** (-0.5)
        n_seg = S // seg_len
        L = M + seg_len
        idx = torch.arange(L)
        mask = (idx[:, None] < M) | (idx[:, None] >= idx[None, :])
        mem = mem0
        outs = []
        for s in range(n_seg):
            xs = x[:, s * seg_len:(s + 1) * seg_len, :].clone()
            h = torch.concatenate([mem, xs], axis=1)
            q = torch.einsum('btd,dhe->bhte', h, Wq)
            k = torch.einsum('btd,dhe->bhte', h, Wk)
            v = torch.einsum('btd,dhe->bhte', h, Wv)
            scores = torch.einsum('bhqe,bhke->bhqk', q, k) * scale
            scores = torch.where(mask[None, None], scores, -1000000000.0)
            p = _softmax(scores, axis=-1)
            o = torch.einsum('bhqk,bhke->bhqe', p, v)
            o = torch.einsum('bhte,hed->btd', o, Wo)
            mem = o[:, :M, :].clone()
            outs.append(o[:, M:, :])
        return torch.concatenate(outs, axis=1)

    def _B_ref(x, w_gate, w_up, w_down):
        return _gelu(x @ w_gate) * (x @ w_up) @ w_down
    x = A_x
    mod = (_silu(c) @ w_mod).reshape(c.shape[0], 6, 1, -1)
    sa, ca, ga, sb, cb, gb = (mod[:, 0].clone(), mod[:, 1].clone(), mod[:, 2].clone(), mod[:, 3].clone(), mod[:, 4].clone(), mod[:, 5].clone())
    h = _layernorm(x, axis=-1) * (1 + ca) + sa
    x = x + ga * _A_ref(h, A_mem0, A_Wq, A_Wk, A_Wv, A_Wo, A_seg_len)
    h = _layernorm(x, axis=-1) * (1 + cb) + sb
    x = x + gb * _B_ref(h, B_w_gate, B_w_up, B_w_down)
    return x
```

```python
import re

def v(i, n=1):
    return f"v{i}" if n == 1 else f"v[{i}:{i+n-1}]"
def a(i, n=1):
    return f"a{i}" if n == 1 else f"a[{i}:{i+n-1}]"
def s(i, n=1):
    return f"s{i}" if n == 1 else f"s[{i}:{i+n-1}]"

_REG = re.compile(r"^-?(?:abs\()?\|?([vas])(?:(\d+)|\[(\d+):(\d+)\])\)?\|?$")

def regs_of(tok):
    tok = tok.strip()
    if tok == "vcc": return {("s", "vcc")}
    if tok == "exec": return {("s", "exec")}
    if tok == "m0": return {("s", "m0")}
    if tok in ("vcc_lo", "vcc_hi"): return {("s", "vcc")}
    if tok in ("exec_lo", "exec_hi"): return {("s", "exec")}
    m = _REG.match(tok)
    if not m: return set()
    k = m.group(1)
    if m.group(2) is not None:
        return {(k, int(m.group(2)))}
    return {(k, i) for i in range(int(m.group(3)), int(m.group(4)) + 1)}

TRANS = ("v_exp_f32", "v_log_f32", "v_rcp_f32", "v_rsq_f32", "v_sqrt_f32", "v_sin_f32", "v_cos_f32")

def split_ops(rest):
    out, depth, cur = [], 0, ""
    for ch in rest:
        if ch == "[": depth += 1
        if ch == "]": depth -= 1
        if ch == "," and depth == 0:
            out.append(cur); cur = ""
        else:
            cur += ch
    out.append(cur)
    return [o.strip() for o in out]

class Ins:
    __slots__ = ("op", "kind", "w", "r", "passes", "srcC", "dpp", "wide_store_data", "states", "sdwa")

def classify(line):
    t = line.split(";")[0].strip()
    parts = t.split(None, 1)
    op = parts[0]
    rest = parts[1] if len(parts) > 1 else ""
    ops = split_ops(rest) if rest else []
    mods = ""
    if ops:
        lp = ops[-1].split(None, 1)
        ops[-1] = lp[0] if lp else ""
        mods = lp[1] if len(lp) > 1 else ""
    I = Ins(); I.op = op; I.w = set(); I.r = set(); I.passes = 0; I.srcC = set(); I.dpp = False
    I.wide_store_data = set(); I.states = 1; I.sdwa = False
    R = [regs_of(o) for o in ops]
    if op == "s_nop":
        I.kind = "nop"; I.states = int(ops[0], 0) + 1
    elif op.startswith("v_mfma") or op.startswith("v_smfmac"):
        I.kind = "mfma"
        I.passes = 8 if "32x32" in op else 4
        I.w = R[0]
        if op.startswith("v_smfmac"):
            I.r = R[1] | R[2] | R[3]; I.srcC = R[0]
        else:
            I.r = R[1] | R[2]; I.srcC = R[3]
    elif op.startswith("v_"):
        I.kind = "valu"
        I.dpp = "_dpp" in op or "quad_perm" in rest or "row_" in rest
        I.sdwa = "_sdwa" in op and "dst_sel" in mods and "dst_sel:DWORD" not in mods
        if op.startswith("v_permlane") and "swap" in op:
            I.w = R[0] | R[1]; I.r = R[0] | R[1]
        elif op.startswith("v_cmp"):
            I.w = R[0]; I.r = set().union(*R[1:])
            if op.startswith("v_cmpx"): I.w |= {("s", "exec")}
        elif op.startswith(("v_add_co", "v_sub_co", "v_addc_co", "v_subb_co")):
            I.w = R[0] | R[1]; I.r = set().union(*R[2:])
        else:
            I.w = R[0]; I.r = set().union(*R[1:]) if len(R) > 1 else set()
            if op.startswith(("v_fmac", "v_dot2c", "v_pk_fmac")) or "_sdwa" in op:
                I.r |= R[0]
            if op.startswith("v_cndmask") and len(ops) == 3:
                I.r |= {("s", "vcc")}
    elif op.startswith("ds_"):
        I.kind = "ds"
        if op.startswith(("ds_read", "ds_bpermute", "ds_permute", "ds_swizzle")):
            I.w = R[0]; I.r = set().union(*R[1:])
        else:
            I.r = set().union(*R)
    elif op.startswith(("buffer_", "global_")):
        I.kind = "vmem"
        lds = " lds" in (" " + mods)
        if op in ("buffer_wbl2", "buffer_inv"):
            pass
        elif "load" in op and not lds:
            I.w = R[0]; I.r = set().union(*R[1:])
        elif "atomic" in op:
            I.r = set().union(*R)
            if "sc0" in mods: I.w = R[0]
        else:
            I.r = set().union(*R)
            if lds: I.r |= {("s", "m0")}
            if "store" in op and ("x4" in op or "x3" in op):
                I.wide_store_data = R[0]
    elif op.startswith("s_"):
        I.kind = "salu"
        if op.startswith(("s_cmp", "s_bitcmp", "s_waitcnt", "s_barrier", "s_branch", "s_cbranch", "s_sleep", "s_setprio", "s_endpgm")):
            I.r = set().union(*R) if R else set()
        else:
            I.w = R[0] if R else set(); I.r = set().union(*R[1:]) if len(R) > 1 else set()
            if "saveexec" in op: I.w |= {("s", "exec")}
    else:
        raise ValueError("unknown instruction: " + line)
    return I


class Asm:
    def __init__(self):
        self.lines = []
        self.hist = []
        self.nlabel = 0
        self.nops_inserted = 0
        self.vmq = []
        self.lgq = []
        self.autowait = True

    def raw(self, text):
        self.lines.append(text)

    def comment(self, text):
        self.lines.append("    ; " + text)

    def newlabel(self, base="L"):
        self.nlabel += 1
        return f"{base}_{self.nlabel}"

    def label(self, name):
        self.lines.append(name + ":")

    def _need(self, I):
        need = 0
        dist = 0
        vreads = {x for x in (I.r | I.srcC) if x[0] in "va"}
        vwrites = {x for x in I.w if x[0] in "va"}
        sreads = {x for x in I.r if x[0] == "s"}
        for P in reversed(self.hist):
            if dist >= 20: break
            req = 0
            if P.kind == "mfma":
                long_ = {4: 8, 8: 12}[P.passes]
                ovl = {4: 6, 8: 10}[P.passes]
                war = {4: 3, 8: 7}[P.passes]
                if I.kind == "mfma":
                    if P.w & I.r: req = max(req, long_)
                    if P.w & I.srcC:
                        if not (P.w == I.srcC and P.passes == I.passes): req = max(req, ovl)
                    elif P.w & I.w:
                        req = max(req, long_)
                elif I.kind in ("valu", "ds", "vmem"):
                    if P.w & (vreads | vwrites): req = max(req, long_)
                    if I.kind == "valu" and (P.srcC & vwrites): req = max(req, war)
            elif P.kind == "valu":
                pv = {x for x in P.w if x[0] in "va"}
                ps = {x for x in P.w if x[0] == "s"}
                if I.kind == "mfma":
                    if pv & vreads: req = max(req, 2)
                    if ("s", "exec") in ps: req = max(req, 4)
                if I.kind == "valu":
                    if I.op.startswith("v_permlane") and (pv & vreads): req = max(req, 2)
                    if I.dpp and (pv & vreads): req = max(req, 2)
                    if I.dpp and ("s", "exec") in ps: req = max(req, 5)
                    if I.op.startswith(("v_readlane", "v_readfirstlane")) and (pv & vreads): req = max(req, 1)
                    if P.op in TRANS and I.op not in TRANS and (pv & vreads): req = max(req, 1)
                    if P.sdwa and (pv & (vreads | vwrites)): req = max(req, 1)
                    if ps & sreads:
                        if I.op.startswith(("v_readlane", "v_writelane")): req = max(req, 4)
                        else: req = max(req, 2)
                    if ("s", "exec") in ps and I.op.startswith(("v_readlane", "v_readfirstlane", "v_writelane", "v_permlane")):
                        req = max(req, 4)
                if I.kind == "vmem" and (ps & sreads): req = max(req, 5)
            elif P.kind == "vmem":
                if P.wide_store_data & vwrites:
                    req = max(req, 2 if I.kind == "valu" else 1)
            elif P.kind == "salu":
                if ("s", "m0") in P.w and I.kind == "vmem" and ("s", "m0") in I.r: req = max(req, 1)
            need = max(need, req - dist)
            dist += P.states
        return need

    def _flush_need(self):
        need = 0; dist = 0
        for P in reversed(self.hist):
            if dist >= 20: break
            req = 0
            if P.kind == "mfma": req = {4: 8, 8: 12}[P.passes]
            elif P.kind == "valu":
                req = 2
                if any(x[0] == "s" and x[1] != "vcc" for x in P.w): req = 5
            elif P.kind == "vmem" and P.wide_store_data: req = 2
            elif P.kind == "salu" and ("s", "m0") in P.w: req = 1
            need = max(need, req - dist)
            dist += P.states
        return need

    def _push(self, I):
        self.hist.append(I)
        if len(self.hist) > 40: self.hist = self.hist[-30:]

    def nop(self, n):
        while n > 0:
            k = min(n, 16)
            t = f"s_nop {k-1}"
            self.lines.append("    " + t)
            self._push(classify(t))
            n -= k

    def _emit_wait(self, vm=None, lg=None):
        parts = []
        if vm is not None: parts.append(f"vmcnt({min(vm, 63)})")
        if lg is not None: parts.append(f"lgkmcnt({min(lg, 15)})")
        if parts: self("s_waitcnt " + " ".join(parts))

    def _q_need(self, q, pred):
        last = -1
        for i, e in enumerate(q):
            if pred(e): last = i
        return None if last < 0 else len(q) - 1 - last

    def wait_tag(self, *tags):
        vm = self._q_need(self.vmq, lambda e: e[1] in tags)
        lg = self._q_need(self.lgq, lambda e: e[1] in tags)
        self._emit_wait(vm, lg)

    def wait_regs(self, regs):
        regs = set(regs)
        vm = self._q_need(self.vmq, lambda e: e[0] & regs)
        lg = self._q_need(self.lgq, lambda e: e[0] & regs)
        self._emit_wait(vm, lg)

    def assume(self, vm=None, lg=None):
        f = lambda l: [(regs_of(x) if x else set(), t) for x, t in l]
        if vm is not None: self.vmq = f(vm)
        if lg is not None: self.lgq = f(lg)

    def __call__(self, text, flush=True, tag=None):
        for line in text.split("\n"):
            t = line.strip()
            if not t: continue
            if t.startswith(";"):
                self.lines.append("    " + t); continue
            if t.endswith(":") and " " not in t:
                self.lines.append(t); continue
            I = classify(t)
            if I.op == "s_waitcnt":
                m = re.search(r"vmcnt\((\d+)\)", t)
                if m:
                    n = int(m.group(1)); self.vmq = self.vmq[len(self.vmq) - n:] if n < len(self.vmq) and n > 0 else ([] if n == 0 else self.vmq)
                m = re.search(r"lgkmcnt\((\d+)\)", t)
                if m:
                    n = int(m.group(1)); self.lgq = self.lgq[len(self.lgq) - n:] if n < len(self.lgq) and n > 0 else ([] if n == 0 else self.lgq)
            elif self.autowait and I.kind in ("valu", "mfma", "ds", "vmem"):
                touched = {x for x in (I.r | I.w | I.srcC) if x[0] in "va"}
                self.wait_regs(touched)
            if I.kind == "vmem" and I.op not in ("buffer_wbl2", "buffer_inv"):
                self.vmq.append(({x for x in I.w if x[0] in "va"}, tag))
            if I.kind == "ds":
                self.lgq.append(({x for x in I.w if x[0] in "va"}, tag))
            need = self._need(I)
            if I.op.startswith(("s_branch", "s_cbranch", "s_setpc", "s_swappc")) and flush:
                need = max(need, self._flush_need() - 1)
            if need > 0:
                self.nops_inserted += need
                self.nop(need)
            self.lines.append("    " + t)
            self._push(I)

    def text(self):
        return "\n".join(self.lines) + "\n"


def interleave(A, prim, fill, per_gap=2, start=0):
    fill = list(fill)
    def emit(x):
        if callable(x): x()
        elif isinstance(x, tuple): A(x[0], tag=x[1])
        else: A(x)
    for i, p in enumerate(prim):
        emit(p)
        if i >= start:
            for _ in range(per_gap):
                if fill: emit(fill.pop(0))
    for x in fill: emit(x)
```

```python
from asmlib import *

KNAME = "adaLN_cond__memory_aug_recurrent_mem_tr__geglu_ffn__prompt_kernel"

WS_PART = 0x0000000
WS_MEM  = 0x0100000
WS_MOD  = 0x0110000
WS_FLG  = 0x0120000
WS_H    = 0x0200000
WS_X1   = 0x0400000
WS_H2   = 0x0600000
WS_F    = 0x0800000
F_SEG   = 2 * 86 * 512
WS_KM   = 0x1000000
WS_VM   = 0x1840000
WS_KX   = 0x2000000
WS_VX   = 0x3000000
WS_O    = 0x4000000
WS_PB   = 0x5000000
WS_DBG  = 0x8000000
WS_SIZE = 0x10000000

P_X, P_MEM0, P_WQ, P_WK, P_WV, P_WO, P_SEG, P_BX, P_WG, P_WU, P_WD, P_C, P_WMOD, P_OUT, P_DBG, P_WS = [32 + 2 * i for i in range(16)]

S_WS = 4
S_DBG = 76
S_WAVE, S_XCC, S_TICK = 20, 21, 22
S_SPIN = 31
SPIN_LIMIT = 1 << 20

DBG_TEAM_TICKET = 0
DBG_TEAM_INIT = 4
DBG_INIT_B = 8
DBG_WTICKET = 64
DBG_INIT_A = 192

LDS_BYTES = 163840
LDS_TICKET = 0

def srd(A, sreg, ptr, nbytes):
    A(f"s_mov_b32 {s(sreg)}, {s(ptr)}")
    A(f"s_and_b32 {s(sreg+1)}, {s(ptr+1)}, 0xffff")
    A(f"s_mov_b32 {s(sreg+2)}, {nbytes:#x}")
    A(f"s_mov_b32 {s(sreg+3)}, 0x20000")

def spin_check(A, abort="L_abort"):
    A(f"s_add_u32 {s(S_SPIN)}, {s(S_SPIN)}, 1")
    A(f"s_cmp_gt_u32 {s(S_SPIN)}, {SPIN_LIMIT}")
    A(f"s_cbranch_scc1 {abort}", flush=False)

def max3_tree(A, regs, tmp, op="v_max3_u32", op2="v_max_u32"):
    cur = list(regs); t = list(tmp); ti = 0
    while len(cur) > 1:
        nxt = []
        i = 0
        while i < len(cur):
            if len(cur) - i >= 3:
                d = t[ti % len(t)]; ti += 1
                A(f"{op.split()[0]} {v(d)}, {v(cur[i])}, {v(cur[i+1])}, {v(cur[i+2])} {' '.join(op.split()[1:])}")
                nxt.append(d); i += 3
            elif len(cur) - i == 2 and len(cur) == 2:
                d = t[ti % len(t)]; ti += 1
                A(f"{op2} {v(d)}, {v(cur[i])}, {v(cur[i+1])}")
                nxt.append(d); i += 2
            else:
                nxt.append(cur[i]); i += 1
        cur = nxt
    assert ti <= len(t), (ti, len(t))
    return cur[0]

def tree_tmp_count(n):
    c = 0
    while n > 1:
        if n == 2: return c + 1
        k = n // 3; c += k; n = k + n % 3
    return c

def stamp(A, cfg, slot_expr_sgpr, off, tmpv, cond_label=None):
    pass


def lane_consts(A, L, g, n16, rp, c):
    A(f"""
    v_and_b32 {v(L)}, 63, v0
    v_lshrrev_b32 {v(g)}, 4, {v(L)}
    v_and_b32 {v(n16)}, 15, {v(L)}
    v_bfe_u32 {v(rp)}, {v(L)}, 2, 2
    v_and_b32 {v(c)}, 3, {v(L)}
    """)

def poll(A, loads, regs, tmp, tail_cond=None, sleep=6, extra_first=None):
    l0 = A.newlabel("L_pa"); ok = A.newlabel("L_pk"); lp = A.newlabel("L_pi")
    A(f"{l0}:")
    for x in loads: A(x)
    A("s_waitcnt vmcnt(0)")
    r = max3_tree(A, regs, tmp)
    A(f"v_cmp_eq_u32 vcc, -1, {v(r)}")
    A(f"s_cbranch_vccz {ok}")
    spin_check(A)
    if tail_cond:
        A(tail_cond)
        A(f"s_cbranch_scc1 {l0}")
    last = sorted(x[1] for x in classify(loads[-1]).w)
    A(f"{lp}:")
    A(f"s_sleep {sleep}")
    A(loads[-1])
    spin_check(A)
    A("s_waitcnt vmcnt(0)")
    r = max3_tree(A, last, tmp) if len(last) > 1 else last[0]
    A(f"v_cmp_eq_u32 vcc, -1, {v(r)}")
    A(f"s_cbranch_vccnz {lp}")
    A(f"s_branch {l0}")
    A(f"{ok}:")

def rnd_pair(A, a_, b_, t):
    A(f"v_cvt_pk_bf16_f32 {v(t)}, {v(a_)}, {v(b_)}")
    A(f"v_lshlrev_b32 {v(a_)}, 16, {v(t)}")
    A(f"v_and_b32 {v(b_)}, 0xffff0000, {v(t)}")

def rnd_list(A, regs, tmps):
    n = len(regs) // 2
    for i in range(n): A(f"v_cvt_pk_bf16_f32 {v(tmps[i])}, {v(regs[2*i])}, {v(regs[2*i+1])}")
    for i in range(n):
        A(f"v_lshlrev_b32 {v(regs[2*i])}, 16, {v(tmps[i])}")
        A(f"v_and_b32 {v(regs[2*i+1])}, 0xffff0000, {v(tmps[i])}")

def rnd_one(A, a_):
    A(f"v_cvt_pk_bf16_f32 {v(a_)}, {v(a_)}, {v(a_)}")
    A(f"v_and_b32 {v(a_)}, 0xffff0000, {v(a_)}")

def unpack(A, dst, src, n):
    for i in range(n):
        A(f"v_lshlrev_b32 {v(dst+2*i)}, 16, {v(src+i)}")
        A(f"v_and_b32 {v(dst+2*i+1)}, 0xffff0000, {v(src+i)}")

def wave_sum(A, regs, tmps):
    for ctl in ("quad_perm:[1,0,3,2]", "quad_perm:[2,3,0,1]", "row_half_mirror", "row_mirror"):
        for r in regs: A(f"v_add_f32_dpp {v(r)}, {v(r)}, {v(r)} {ctl} row_mask:0xf bank_mask:0xf")
    for op in ("v_permlane16_swap_b32", "v_permlane32_swap_b32"):
        for r, t in zip(regs, tmps): A(f"v_mov_b32 {v(t)}, {v(r)}")
        for r, t in zip(regs, tmps): A(f"{op} {v(r)}, {v(t)}")
        for r, t in zip(regs, tmps): A(f"v_add_f32 {v(r)}, {v(r)}, {v(t)}")

def ln_stats(A, xs, mb, ri, tmp):
    n = len(xs)
    for k, x in enumerate(xs):
        t = tmp[k]
        for i in range(0, 4, 2): A(f"v_pk_add_f32 {v(t+i,2)}, {v(x+i,2)}, {v(x+4+i,2)}")
        A(f"v_pk_add_f32 {v(t,2)}, {v(t,2)}, {v(t+2,2)}")
        A(f"v_add_f32 {v(mb[k])}, {v(t)}, {v(t+1)}")
    wave_sum(A, mb, [t for t in tmp])
    for k in range(n): A(f"v_mul_f32 {v(mb[k])}, 0x3b000000, {v(mb[k])}")
    for k, x in enumerate(xs):
        t = tmp[k]
        for i in range(8): A(f"v_sub_f32 {v(t+i)}, {v(x+i)}, {v(mb[k])}")
        A(f"v_mul_f32 {v(ri[k])}, {v(t)}, {v(t)}")
        A(f"v_mul_f32 {v(t)}, {v(t+1)}, {v(t+1)}")
        for i in range(2, 8, 2):
            A(f"v_fmac_f32 {v(ri[k])}, {v(t+i)}, {v(t+i)}")
            A(f"v_fmac_f32 {v(t)}, {v(t+i+1)}, {v(t+i+1)}")
        A(f"v_add_f32 {v(ri[k])}, {v(ri[k])}, {v(t)}")
    wave_sum(A, ri, [t for t in tmp])
    for k in range(n):
        A(f"v_mul_f32 {v(ri[k])}, 0x3b000000, {v(ri[k])}")
        rnd_pair(A, mb[k], ri[k], tmp[k])
        A(f"v_add_f32 {v(ri[k])}, 0x3727c5ac, {v(ri[k])}")
        rnd_one(A, ri[k])
        A(f"v_sqrt_f32 {v(ri[k])}, {v(ri[k])}")
        rnd_one(A, ri[k])
        A(f"v_rcp_f32 {v(ri[k])}, {v(ri[k])}")

def ln_apply(A, x, mb, ri, opc, sh, out, t):
    xs = list(range(x, x + 8)); ts = list(range(t, t + 4))
    for i in xs: A(f"v_sub_f32 {v(i)}, {v(i)}, {v(mb)}")
    rnd_list(A, xs, ts)
    for i in xs: A(f"v_mul_f32 {v(i)}, {v(i)}, {v(ri)}")
    rnd_list(A, xs, ts)
    for i in range(0, 8, 2): A(f"v_pk_mul_f32 {v(x+i,2)}, {v(x+i,2)}, {v(opc+i,2)}")
    rnd_list(A, xs, ts)
    for i in range(0, 8, 2): A(f"v_pk_add_f32 {v(x+i,2)}, {v(x+i,2)}, {v(sh+i,2)}")
    for i in range(4):
        A(f"v_cvt_pk_bf16_f32 {v(out+i)}, {v(x+2*i)}, {v(x+2*i+1)}")
    for i in range(4):
        A(f"v_min_u32 {v(out+i)}, -2, {v(out+i)}")

def arrive_init(A, vt):
    lab = A.newlabel("L_ai")
    A(f"s_cmp_lg_u32 {s(S_WAVE)}, 0")
    A(f"s_cbranch_scc1 {lab}")
    A(f"s_and_b32 s23, {s(S_TICK)}, 1")
    A(f"s_cmp_eq_u32 s23, 0")
    A(f"s_cselect_b32 s23, {DBG_INIT_A}, {DBG_INIT_B}")
    A(f"v_mov_b32 {v(vt)}, s23")
    A(f"v_mov_b32 {v(vt+1)}, 1")
    A("s_mov_b64 exec, 1")
    A(f"buffer_atomic_add {v(vt+1)}, {v(vt)}, {s(S_DBG,4)}, 0 offen")
    A("s_mov_b64 exec, -1")
    A(f"{lab}:")

def wait_counter(A, off_list, total, vt, st):
    lab = A.newlabel("L_wc")
    A(f"{lab}:")
    for k, off in enumerate(off_list):
        A(f"v_mov_b32 {v(vt+k)}, {off}")
        A(f"buffer_load_dword {v(vt+2+k)}, {v(vt+k)}, {s(S_DBG,4)}, 0 offen sc1")
    spin_check(A)
    A("s_waitcnt vmcnt(0)")
    if len(off_list) == 2: A(f"v_add_u32 {v(vt+2)}, {v(vt+2)}, {v(vt+3)}")
    A(f"v_readfirstlane_b32 {s(st)}, {v(vt+2)}")
    A(f"s_cmp_lg_u32 {s(st)}, {total}")
    A(f"s_cbranch_scc1 {lab}")

def wait_init(A, cfg, vt, st):
    if not cfg.get("no_worker_init"):
        wait_counter(A, [DBG_INIT_A, DBG_INIT_B], 224, vt, st)
```

```python
from common import *

LDS_K = 131072
LDS_X = 147456
LDS_O = 151552
LDS_MEMS = 153856
O_RS = 288

vL16, vMs, vXw, vXr, vOw, vOr, vPst, vPld, vMst, vIdx, vNeg, vWo, vWo2, vKr, vQ = range(1, 16)
vSel = 16
vVp = 20
vOnes = 22
W_O45 = 24
vKx = 40
vA = 72
aQ0, aK0, aQ1, aK1, aV0, aV1 = 104, 108, 112, 116, 120, 124
vXB = 104
vSM, vS0, vS1 = 76, 80, 84
vVx = 88
vpa, vpb = 96, 98
W_V = 128

S_WQ, S_WK, S_WV, S_WO = 8, 12, 16, 72
S_STEP = 23
S_PL = 25
S_PST = 29
S_MA, S_MB = 24, 30
S_KX, S_VX, S_KM, S_VM, S_C = 64, 66, 67, 68, 69
S_T0, S_T1 = 70, 71
S_FC, S_FN, S_KL, S_VL = 12, 13, 14, 15
S_FL = 16
S_LATE = 17
S_N1, S_N9 = 98, 99
PSLOT = 0x40000

def wq(t, n): return a((t * 2 + n) * 8, 8)
def wk(t, n): return a(128 + (t * 2 + n) * 8, 8)
def wv(t, n): return v(W_V + (t * 2 + n) * 8, 8)
def smf(acc, areg, b): return f"v_smfmac_f32_16x16x64_bf16 {v(acc,4)}, {v(areg,4)}, {b}, {v(vIdx)}"

def weight_loader(A, chunks):
    n = len(chunks)
    for i in range(min(3, n)):
        chunks[i][0](i % 4)
    for i in range(n):
        inflight = min(2, n - 1 - i)
        A(f"s_waitcnt vmcnt({8*inflight}) lgkmcnt(0)")
        A("s_barrier")
        if i + 3 < n:
            chunks[i + 3][0]((i + 3) % 4)
        chunks[i][1](i % 4)

def gen_team(A, cfg):
    diag = cfg.get("diag_team", False)
    def ST(k):
        if diag and (k in cfg.get("stamps", range(9))): A(f"s_memtime {s(80+2*k,2)}")
    h = S_TICK
    A("L_team:")
    srd(A, S_WQ, P_WQ, 0x400000); srd(A, S_WK, P_WK, 0x400000); srd(A, S_WV, P_WV, 0x400000); srd(A, S_WO, P_WO, 0x400000)
    L, g, n16, t0, t1, t2, rp, c = range(60, 68)
    A(f"""
    v_and_b32 {v(L)}, 63, v0
    v_lshrrev_b32 {v(g)}, 4, {v(L)}
    v_and_b32 {v(n16)}, 15, {v(L)}
    v_bfe_u32 {v(rp)}, {v(L)}, 2, 2
    v_and_b32 {v(c)}, 3, {v(L)}
    v_lshlrev_b32 {v(vL16)}, 4, {v(L)}
    s_lshl_b32 {s(S_T0)}, {s(S_WAVE)}, 11
    v_add_u32 {v(vQ)}, {s(S_T0)}, {v(vL16)}
    v_add_u32 {v(vKr)}, {LDS_K}, {v(vL16)}
    v_add_u32 {v(vMs)}, {LDS_MEMS}, {v(vL16)}
    v_lshrrev_b32 {v(t0)}, 2, {v(n16)}
    v_xor_b32 {v(t0)}, {v(t0)}, {v(g)}
    v_lshlrev_b32 {v(t0)}, 3, {v(t0)}
    v_lshl_add_u32 {v(t0)}, {v(n16)}, 5, {v(t0)}
    s_lshl_b32 {s(S_T0)}, {s(S_WAVE)}, 10
    s_add_u32 {s(S_T1)}, {s(S_T0)}, {LDS_X}
    v_add_u32 {v(vXw)}, {s(S_T1)}, {v(t0)}
    v_lshl_add_u32 {v(t0)}, {v(g)}, 2, {v(rp)}
    v_xor_b32 {v(t1)}, {v(c)}, {v(g)}
    v_lshlrev_b32 {v(t1)}, 3, {v(t1)}
    v_lshl_add_u32 {v(t0)}, {v(t0)}, 5, {v(t1)}
    v_add_u32 {v(vXr)}, {LDS_X}, {v(t0)}
    v_mul_u32_u24 {v(t0)}, {O_RS}, {v(n16)}
    v_lshl_add_u32 {v(t0)}, {v(g)}, 3, {v(t0)}
    s_lshl_b32 {s(S_T0)}, {s(S_WAVE)}, 6
    s_add_u32 {s(S_T0)}, {s(S_T0)}, {LDS_O}
    v_add_u32 {v(vOw)}, {s(S_T0)}, {v(t0)}
    v_and_b32 {v(t0)}, 7, {v(L)}
    v_mul_u32_u24 {v(t0)}, {O_RS}, {v(t0)}
    v_lshl_add_u32 {v(t0)}, {v(g)}, 4, {v(t0)}
    v_add_u32 {v(vOr)}, {LDS_O}, {v(t0)}
    v_lshrrev_b32 {v(t0)}, 5, {v(L)}
    v_lshl_add_u32 {v(t0)}, {v(t0)}, 4, {v(n16)}
    v_and_b32 {v(t1)}, 1, {v(g)}
    v_lshlrev_b32 {v(t1)}, 4, {v(t1)}
    v_lshl_add_u32 {v(vPst)}, {v(t0)}, 5, {v(t1)}
    v_lshrrev_b32 {v(t0)}, 2, {v(L)}
    v_lshlrev_b32 {v(t1)}, 4, {v(c)}
    v_lshl_add_u32 {v(vPld)}, {v(t0)}, 13, {v(t1)}
    s_lshr_b32 {s(S_T0)}, {s(h)}, 3
    s_lshl_b32 {s(S_T0)}, {s(S_T0)}, 1
    s_lshr_b32 {s(S_T1)}, {s(S_WAVE)}, 1
    s_add_u32 {s(S_T0)}, {s(S_T0)}, {s(S_T1)}          ; t
    s_and_b32 {s(S_T1)}, {s(h)}, 7
    s_lshl_b32 {s(S_T1)}, {s(S_T1)}, 1
    s_and_b32 s27, {s(S_WAVE)}, 1
    s_add_u32 {s(S_T1)}, {s(S_T1)}, s27                ; xp
    s_lshl_b32 {s(S_PL)}, {s(S_T0)}, 10
    s_lshl_b32 s27, {s(S_T1)}, 6
    s_add_u32 {s(S_PL)}, {s(S_PL)}, s27
    s_add_u32 {s(S_PL)}, {s(S_PL)}, {WS_PART:#x}
    s_add_u32 {s(S_PL+1)}, {s(S_PL)}, 0x20000
    s_lshl_b32 s27, {s(S_T0)}, 10
    s_lshr_b32 s28, {s(S_T1)}, 1
    s_lshl_b32 s28, s28, 7
    s_add_u32 s27, s27, s28
    s_and_b32 s28, {s(S_T1)}, 1
    s_lshl_b32 s28, s28, 3
    s_add_u32 s27, s27, s28
    v_and_b32 {v(t0)}, 1, {v(L)}
    v_lshl_add_u32 {v(t0)}, {v(t0)}, 2, {v(rp)}         ; row j
    v_and_b32 {v(t1)}, 2, {v(L)}
    v_lshlrev_b32 {v(t2)}, 1, {v(t1)}
    v_lshl_add_u32 {v(t2)}, {v(t0)}, 4, {v(t2)}
    v_add_u32 {v(vMst)}, s27, {v(t2)}
    s_lshl_b32 s27, {s(S_T0)}, 7
    s_lshl_b32 s28, {s(S_T1)}, 2
    s_add_u32 s27, s27, s28
    v_lshl_add_u32 v58, {v(t0)}, 10, {v(t1)}
    v_mov_b32 {v(t0)}, 0x4444
    v_mov_b32 {v(t1)}, 0xeeee
    v_and_b32 {v(t2)}, 8, {v(L)}
    v_cmp_eq_u32 vcc, 0, {v(t2)}
    v_cndmask_b32 {v(vIdx)}, {v(t1)}, {v(t0)}, vcc
    v_mov_b32 {v(t0)}, 0xf149f2ca
    v_cmp_gt_u32 vcc, 32, {v(L)}
    v_cndmask_b32 {v(vNeg)}, 0, {v(t0)}, vcc
    s_lshl_b32 {s(S_T0)}, {s(S_WAVE)}, 13
    v_add_u32 {v(vWo)}, {s(S_T0)}, {v(vL16)}
    v_add_u32 {v(vWo2)}, 0x10000, {v(vWo)}
    s_lshl_b32 {s(S_T0)}, {s(h)}, 2
    s_add_u32 {s(S_T0)}, {s(S_T0)}, {s(S_WAVE)}        ; 4h+w
    s_lshl_b32 {s(S_PST)}, {s(S_T0)}, 11
    s_add_u32 {s(S_PST)}, {s(S_PST)}, {WS_PART:#x}
    s_lshl_b32 {s(S_KX)}, {s(h)}, 13
    s_add_u32 {s(S_VX)}, {s(S_KX)}, {WS_VX:#x}
    s_add_u32 {s(S_KX)}, {s(S_KX)}, {WS_KX:#x}
    s_lshl_b32 {s(S_KM)}, {s(S_T0)}, 10
    s_add_u32 {s(S_KM)}, {s(S_KM)}, {WS_KM - 0x20000:#x}
    s_lshl_b32 {s(S_VM)}, {s(S_T0)}, 9
    s_add_u32 {s(S_VM)}, {s(S_VM)}, {WS_VM - 0x10000:#x}
    s_mov_b32 {s(S_C)}, 0x3e0293ee          ; 128^-0.5 * log2(e)
    s_mov_b32 {s(S_MA)}, {WS_MEM:#x}
    s_mov_b32 {s(S_MB)}, {WS_MEM + 8192:#x}
    v_and_b32 {v(t0)}, 1, {v(L)}
    v_lshlrev_b32 {v(t0)}, 4, {v(t0)}
    v_mov_b32 {v(t1)}, 0x3f80
    v_lshlrev_b32 {v(t0)}, {v(t0)}, {v(t1)}
    v_bfe_u32 {v(t1)}, {v(L)}, 1, 2
    """)
    for y in range(4):
        A(f"v_cmp_eq_u32 vcc, {y}, {v(t1)}")
        A(f"v_cndmask_b32 {v(vSel+y)}, 0, {v(t0)}, vcc")
    for i in range(2): A(f"v_mov_b32 {v(vOnes+i)}, 0x3f803f80")
    for i in range(2): A(f"v_mov_b32 {v(vVp+i)}, 0")
    srd(A, 84, P_MEM0, 8192)
    A(f"buffer_load_ushort v56, v58, s[84:87], s27 offen")
    A(f"buffer_load_ushort v57, v58, s[84:87], s27 offen offset:64")
    z = 68
    for i in range(4): A(f"v_mov_b32 {v(z+i)}, -1")
    for sl in range(2):
        for i in range(2):
            A(f"s_xor_b32 {s(S_T0)}, {s(S_PL+i)}, {sl*PSLOT:#x}")
            A(f"buffer_store_dwordx4 {v(z,4)}, {v(vPld)}, {s(S_WS,4)}, {s(S_T0)} offen")
    for sl in (1, 2):
        A(f"s_mov_b32 {s(S_T0)}, {WS_MEM + sl*8192:#x}")
        A(f"buffer_store_dword {v(z)}, {v(vMst)}, {s(S_WS,4)}, {s(S_T0)} offen")
    A(f"v_lshl_or_b32 v56, v57, 16, v56")
    A(f"v_min_u32 v56, -2, v56")
    A(f"buffer_store_dword v56, {v(vMst)}, {s(S_WS,4)}, {s(S_MA)} offen")

    vD = 72
    vT = [77, 78]
    vTo = 79
    vTmp = 80
    A(f"""
    v_lshrrev_b32 {v(t0)}, 1, {v(g)}
    v_lshlrev_b32 {v(t0)}, 5, {v(t0)}
    v_lshlrev_b32 {v(t1)}, 4, {v(n16)}
    v_xor_b32 {v(t0)}, {v(t0)}, {v(t1)}
    s_and_b32 {s(S_T0)}, {s(S_WAVE)}, 1
    s_lshl_b32 {s(S_T0)}, {s(S_T0)}, 7
    v_xor_b32 {v(t0)}, {s(S_T0)}, {v(t0)}
    v_lshl_add_u32 {v(vD)}, {v(g)}, 13, {v(t0)}
    v_xor_b32 {v(vD+1)}, 64, {v(vD)}
    v_lshrrev_b32 {v(t0)}, 1, {v(g)}
    v_lshlrev_b32 {v(t0)}, 3, {v(t0)}
    v_and_b32 {v(t2)}, 1, {v(g)}
    v_lshl_add_u32 {v(t0)}, {v(t2)}, 1, {v(t0)}
    v_lshrrev_b32 {v(t1)}, 1, {v(rp)}
    v_lshl_add_u32 {v(t0)}, {v(t1)}, 2, {v(t0)}
    v_lshl_or_b32 {v(t2)}, {v(t1)}, 1, {v(t2)}
    v_and_b32 {v(t1)}, 1, {v(rp)}
    v_lshl_add_u32 {v(t0)}, {v(t1)}, 5, {v(t0)}        ; row
    v_lshl_or_b32 {v(t2)}, {v(t1)}, 2, {v(t2)}         ; f
    v_lshlrev_b32 {v(t2)}, 5, {v(t2)}
    v_lshl_or_b32 {v(t2)}, {v(c)}, 3, {v(t2)}          ; f*32 + 8c
    s_lshl_b32 {s(S_T0)}, {s(S_WAVE)}, 6
    v_xor_b32 {v(t1)}, {s(S_T0)}, {v(t2)}              ; ((2w) ^ f)*32 + 8c
    v_lshl_add_u32 {v(vT[0])}, {v(t0)}, 8, {v(t1)}
    v_xor_b32 {v(vT[1])}, 32, {v(vT[0])}
    v_lshrrev_b32 {v(t0)}, 1, {v(g)}
    v_lshlrev_b32 {v(t0)}, 3, {v(t0)}
    v_and_b32 {v(t1)}, 1, {v(g)}
    v_lshl_add_u32 {v(t0)}, {v(t1)}, 2, {v(t0)}
    v_and_b32 {v(t2)}, 1, {v(rp)}
    v_add_u32 {v(t0)}, {v(t0)}, {v(t2)}
    v_lshlrev_b32 {v(t0)}, 10, {v(t0)}
    v_lshl_or_b32 {v(t0)}, {v(t1)}, 7, {v(t0)}
    v_lshl_or_b32 {v(t0)}, {v(t2)}, 6, {v(t0)}
    v_lshrrev_b32 {v(t1)}, 1, {v(rp)}
    v_lshl_or_b32 {v(t0)}, {v(t1)}, 5, {v(t0)}
    v_lshl_or_b32 {v(t0)}, {v(c)}, 3, {v(t0)}
    s_lshl_b32 {s(S_T0)}, {s(S_WAVE)}, 8
    v_add_u32 {v(vTo)}, {s(S_T0)}, {v(t0)}
    """)
    S_ROW, S_LB, S_OW = 80, 81, 82
    A(f"""
    s_lshl_b32 {s(S_ROW)}, {s(S_WAVE)}, 18
    s_lshl_b32 {s(S_T0)}, {s(h)}, 8
    s_add_u32 {s(S_ROW)}, {s(S_ROW)}, {s(S_T0)}
    s_lshl_b32 {s(S_LB)}, {s(S_WAVE)}, 13
    s_lshl_b32 {s(S_OW)}, {s(h)}, 17
    s_add_u32 {s(S_OW)}, {s(S_OW)}, {s(S_LB)}
    """)
    def issue_qkv(srdreg, ch):
        def f(slot):
            for i in range(8):
                A(f"s_add_u32 m0, {s(S_LB)}, {slot*32768 + i*1024}")
                A(f"s_add_u32 {s(S_T0)}, {s(S_ROW)}, {(128*ch + 4*i)*8192:#x}")
                A(f"buffer_load_dwordx4 {v(vD + (i&1))}, {s(srdreg,4)}, {s(S_T0)} offen lds")
        return f
    def cons_qkv(regf, ch):
        def f(slot):
            hi = slot >= 2
            if hi:
                A(f"v_add_u32 {v(vTmp)}, 0x10000, {v(vT[0])}")
                A(f"v_add_u32 {v(vTmp+1)}, 0x10000, {v(vT[1])}")
            for t2_ in range(2):
                for n in range(2):
                    for r in (0, 2, 4, 6):
                        off = (64*t2_ + 16*(r//4) + (r % 4)//2) * 256 + (slot % 2) * 32768
                        base = vTmp + n if hi else vT[n]
                        A(f"ds_read_b64_tr_b16 {regf(2*ch + t2_, n, r)}, {v(base)} offset:{off}")
        return f
    def issue_wo(ch):
        def f(slot):
            for i in range(8):
                fx = (i & 1) * 64 + ((i >> 2) & 1) * 128
                A(f"v_xor_b32 {v(vTmp+2+(i&1))}, {fx}, {v(vL16)}")
                A(f"s_add_u32 m0, {s(S_LB)}, {slot*32768 + i*1024}")
                A(f"s_add_u32 {s(S_T0)}, {s(S_OW)}, {(32*ch + i)*1024:#x}")
                A(f"buffer_load_dwordx4 {v(vTmp+2+(i&1))}, {s(S_WO,4)}, {s(S_T0)} offen lds")
        return f
    vCv = 84
    def cons_wo(u):
        def f(slot):
            for p in range(4):
                A(f"v_xor_b32 {v(vTmp)}, {p*64 + (0x10000 if slot >= 2 else 0)}, {v(vTo)}")
                for r in (0, 2, 4, 6):
                    A(f"ds_read_b64_tr_b16 {v(vCv + 8*p + r, 2)}, {v(vTmp)} offset:{(16*(r//4) + 2*((r%4)//2))*1024 + (slot % 2)*32768}")
            A("s_waitcnt lgkmcnt(0)")
            A("s_barrier")
            for n in range(8):
                if u < 2 and n in (2, 3): continue
                srcreg = vCv + 4*n if n >= 2 else W_V + 8*u + 4*n
                A(f"ds_write_b128 {v(vWo2 if slot >= 2 else vWo)}, {v(srcreg, 4)} offset:{(slot % 2)*32768 + n*1024}")
            A("s_waitcnt lgkmcnt(0)")
            for r in range(0, 8, 2): A(f"v_mov_b64 {v(W_V + 8*u + r, 2)}, {v(vCv + r, 2)}")
            if u < 2:
                for r in range(0, 8, 2): A(f"v_mov_b64 {v(W_O45 + 8*u + r, 2)}, {v(vCv + 8 + r, 2)}")
        return f
    chunks = []
    for ch in range(4): chunks.append((issue_qkv(S_WQ, ch), cons_qkv(lambda t, n, r: a((t*2+n)*8 + r, 2), ch)))
    for ch in range(4): chunks.append((issue_qkv(S_WK, ch), cons_qkv(lambda t, n, r: a(128 + (t*2+n)*8 + r, 2), ch)))
    for ch in range(4): chunks.append((issue_qkv(S_WV, ch), cons_qkv(lambda t, n, r: v(W_V + (t*2+n)*8 + r, 2), ch)))
    for ch in range(4): chunks.append((issue_wo(ch), cons_wo(ch)))
    c0 = chunks[0][1]
    def c0w(slot):
        lab = A.newlabel("L_tinit")
        A(f"s_cmp_lg_u32 {s(S_WAVE)}, 0")
        A(f"s_cbranch_scc1 {lab}")
        A(f"v_mov_b32 {v(vTmp)}, {DBG_TEAM_INIT}")
        A(f"v_mov_b32 {v(vTmp+1)}, 1")
        A("s_mov_b64 exec, 1")
        A(f"buffer_atomic_add {v(vTmp+1)}, {v(vTmp)}, {s(S_DBG,4)}, 0 offen")
        A("s_mov_b64 exec, -1")
        A(f"{lab}:")
        c0(slot)
    chunks[0] = (chunks[0][0], c0w)
    weight_loader(A, chunks)

    wait_counter(A, [DBG_TEAM_INIT], 32, 60, S_T0)
    wait_init(A, cfg, 60, S_T0)

    A(f"""
    s_lshl_b32 {s(S_FL)}, {s(h)}, 6
    s_add_u32 {s(S_FL)}, {s(S_FL)}, {WS_FLG:#x}
    s_mov_b32 {s(S_FC)}, 0
    s_mov_b32 {s(S_FN)}, 0
    s_lshl_b32 {s(S_KL)}, {s(S_WAVE)}, 11
    s_add_u32 {s(S_KL)}, {s(S_KL)}, {LDS_K}
    s_lshl_b32 {s(S_VL)}, {s(S_WAVE)}, 13
    s_add_u32 {s(S_VL)}, {s(S_VL)}, 2048
    s_mov_b32 {s(S_STEP)}, 0
    """)
    FL = 124
    flag_load = lambda r: f"buffer_load_dwordx4 {v(r,4)}, off, {s(S_WS,4)}, {s(S_FL)} sc1"
    def flag_check(r, sfx):
        A(f"L_fl{sfx}:")
        A(f"v_readfirstlane_b32 {s(S_T0)}, {v(r)}")
        A(f"v_readfirstlane_b32 {s(S_T1)}, {v(r+1)}")
        A(f"s_cmp_eq_u32 {s(S_FC)}, 1")
        A(f"s_cselect_b32 {s(S_T0)}, {s(S_T1)}, {s(S_T0)}")
        A(f"v_readfirstlane_b32 {s(S_T1)}, {v(r+2)}")
        A(f"s_cmp_eq_u32 {s(S_FC)}, 2")
        A(f"s_cselect_b32 {s(S_T0)}, {s(S_T1)}, {s(S_T0)}")
        A(f"s_cmp_gt_u32 {s(S_T0)}, {s(S_FN)}")
        A(f"s_cbranch_scc0 L_flr{sfx}", flush=False)
        A(f"L_flok{sfx}:")
        A(f"s_add_u32 {s(S_FC)}, {s(S_FC)}, 1")
        A(f"s_cmp_eq_u32 {s(S_FC)}, 3")
        A(f"s_addc_u32 {s(S_FN)}, {s(S_FN)}, 0")
        A(f"s_cmp_eq_u32 {s(S_FC)}, 3")
        A(f"s_cselect_b32 {s(S_FC)}, 0, {s(S_FC)}")
    tails = []
    def flag_retry(r, sfx):
        def f():
            A(f"L_flr{sfx}:")
            A.assume(vm=[], lg=[])
            A(f"s_cmp_ge_u32 {s(S_FN)}, 21")
            A(f"s_cbranch_scc1 L_flok{sfx}")
            A("s_sleep 4")
            A(flag_load(r))
            spin_check(A)
            A("s_waitcnt vmcnt(0)")
            A(f"s_branch L_fl{sfx}")
        tails.append(f)
    def kv_dma(i):
        if i < 2:
            return [f"s_mov_b32 m0, {s(S_KL)}", f"s_nop 0", f"buffer_load_dwordx4 {v(vQ)}, {s(S_WS,4)}, {s(S_KX)} offen offset:{i*1024} sc1 lds"]
        return [f"s_mov_b32 m0, {s(S_VL)}", f"s_nop 0", f"buffer_load_dwordx4 {v(vQ)}, {s(S_WS,4)}, {s(S_VX)} offen offset:{(i-2)*1024} sc1 lds"]
    kv_adv = [f"s_add_u32 {s(S_KX)}, {s(S_KX)}, 0x40000", f"s_add_u32 {s(S_VX)}, {s(S_VX)}, 0x40000",
              f"s_xor_b32 {s(S_KL)}, {s(S_KL)}, 0x2000", f"s_xor_b32 {s(S_VL)}, {s(S_VL)}, 0x8000"]
    for k in range(2):
        A(flag_load(FL)); A("s_waitcnt vmcnt(0)")
        flag_check(FL, f"_p{k}"); flag_retry(FL, f"_p{k}")
    A("s_barrier")
    for i in range(4):
        for x in kv_dma(i): A(x)
    for x in kv_adv: A(x)
    for r in range(aQ0, aV1 + 4, 2): A(f"v_mov_b64 {v(r,2)}, 0")
    for i in range(2): A(f"s_xor_b32 {s(S_PL+i)}, {s(S_PL+i)}, {PSLOT:#x}")
    A(f"s_xor_b32 {s(S_PST)}, {s(S_PST)}, {PSLOT:#x}")
    A("s_waitcnt vmcnt(0) lgkmcnt(0)")
    for w in range(1, 4):
        A(f"s_cmp_eq_u32 {s(S_WAVE)}, {w}")
        A(f"s_cbranch_scc1 L_top_{w}")

    def km_pub_list(w, tmp, t8):
        xoff = (lambda o: f"{v(vXr)} offset:{w*1024 + o}") if w is not None else (lambda o: f"{v(t8 + 1)} offset:{o}")
        l = [f"ds_read_b64_tr_b16 {v(tmp,2)}, {xoff(0)}", f"ds_read_b64_tr_b16 {v(tmp+2,2)}, {xoff(512)}",
             f"v_lshrrev_b32 {v(t8)}, 1, {v(vL16)}",
             f"buffer_store_dwordx2 {v(vVp,2)}, {v(t8)}, {s(S_WS,4)}, {s(S_VM)} offen sc1",
             f"s_add_u32 {s(S_VM)}, {s(S_VM)}, 0x10000"]
        l2 = [f"v_min_u32 {v(tmp+r)}, -2, {v(tmp+r)}" for r in range(4)]
        l2 += [f"buffer_store_dwordx4 {v(tmp,4)}, {v(vL16)}, {s(S_WS,4)}, {s(S_KM)} offen sc1",
               f"s_add_u32 {s(S_KM)}, {s(S_KM)}, 0x20000"]
        return l, l2

    wbuf = [40, 48, 56, 64, 104, 112]
    NB = len(wbuf)
    def lds_operand(p, u, b):
        return [f"ds_read_b128 {v(b + 4*half, 4)}, {v(vWo2 if u >= 2 else vWo)} offset:{(u % 2)*32768 + (2*p + half)*1024}" for half in range(2)]
    def wreg(k):
        return v(W_V + 8*k, 8) if k < 4 else v(W_O45 + 8*(k - 4), 8) if k < 6 else v(wbuf[(k - 6) % NB], 8)
    def wread(j):
        return lds_operand((6 + j) // 4, (6 + j) % 4, wbuf[j % NB])
    accs = [84, 76, 80, 120]
    oA = [88, 92, 96, 100]
    D9 = cfg.get("D9", [0, 0, 0, 0]); D1 = cfg.get("D1", [0, 0, 0, 0])
    for w in range(4):
        A(f"L_top_{w}:")
        A.hist = []
        A.assume(vm=[], lg=[])
        own = vA + 8*w
        mem_loads = [f"buffer_load_dwordx4 {v(own + 4*b,4)}, {v(vQ)}, {s(S_WS,4)}, {s(S_MA)} offen offset:{b*1024} sc1" for b in range(2)]
        for x in mem_loads: A(x)
        KT = 68
        RZ = 72
        l1, l2 = km_pub_list(w, KT, 0)
        wvr = [lds_operand(0, u, vKx + 8*u) for u in range(4)]
        for x in l1[:3] + wvr[0] + wvr[1] + wvr[2]: A(x)
        for x in l2[:4]: A(x)
        A.wait_regs(regs_of(v(own, 8)))
        A(f"L_t1_{w}:")
        for b in range(2):
            A(f"ds_write_b128 {v(vMs)}, {v(own + 4*b, 4)} offset:{(2*w+b)*1024}", tag="mw")
        oth = vA + 8*((w + 1) % 4)
        r = max3_tree(A, list(range(own, own + 8)), list(range(oth, oth + 4)))
        A(f"v_cmp_eq_u32 vcc, -1, {v(r)}")
        A(f"s_cbranch_vccnz L_t1r_{w}", flush=False)
        def t1_retry(w=w, mem_loads=mem_loads):
            A(f"L_t1r_{w}:")
            A.assume(vm=[], lg=[])
            for x in mem_loads: A(x)
            if diag: A(f"s_add_u32 {s(S_N1)}, {s(S_N1)}, 1")
            spin_check(A)
            A("s_waitcnt vmcnt(0)")
            A(f"s_branch L_t1_{w}")
        tails.append(t1_retry)
        ST(1)
        order = [(2*w + k) % 8 for k in range(8)]
        qk = lambda t: [smf(aQ0, vA + 4*t, wq(t, 0)), smf(aK0, vA + 4*t, wk(t, 0)), smf(aQ1, vA + 4*t, wq(t, 1)), smf(aK1, vA + 4*t, wk(t, 1))]
        for x in qk(order[0]): A(x)
        A(f"s_mov_b32 {s(S_MA)}, {s(S_MB)}")
        A(f"s_add_u32 {s(S_MB)}, {s(S_MB)}, 8192")
        A(f"s_cmp_eq_u32 {s(S_MB)}, {WS_MEM + 24576:#x}")
        A(f"s_cselect_b32 {s(S_MB)}, {WS_MEM:#x}, {s(S_MB)}")
        A("s_waitcnt lgkmcnt(0)")
        A("s_barrier")
        rd = [f"ds_read_b128 {v(vA + 4*t, 4)}, {v(vMs)} offset:{t*1024}" for t in order[2:]]
        A(rd.pop(0))
        rs = lambda i: [f"buffer_store_dwordx4 {v(RZ,4)}, {v(vPld)}, {s(S_WS,4)}, {s(S_PL+i)} offen", f"s_xor_b32 {s(S_PL+i)}, {s(S_PL+i)}, {PSLOT:#x}"]
        rest = [kv_dma(0), kv_dma(1), kv_dma(2), kv_dma(3), l2[4:6] + wvr[3], l1[3:5], []]
        rest2 = [rs(0), rs(1), [f"buffer_store_dword {v(RZ)}, {v(vMst)}, {s(S_WS,4)}, {s(S_MB)} offen", f"s_xor_b32 {s(S_PST)}, {s(S_PST)}, {PSLOT:#x}"]]
        for gi, t in enumerate(order[1:]):
            for j, x in enumerate(qk(t)):
                A(x)
                for _ in range(2):
                    if rd: A(rd.pop(0))
                if j == w:
                    for y in rest.pop(0): A(y)
        ST(2)
        vq = [smf(aV0 if n == 0 else aV1, vA + 4*t, wv(t, n) if t >= 2 else v(vKx + (2*t + n)*8, 8)) for t in range(8) for n in range(2)]
        def vnext(k=1):
            for _ in range(k):
                if vq: A(vq.pop(0))
        kx = lambda i: f"ds_read_b128 {v(vKx + 4*i, 4)}, {v(vKr)} offset:{i*1024}"
        vnext(cfg.get("va", 2))
        vm_ = cfg.get("vm", [0, 0, 2, 0, 0])
        for j, (qa, ka, off) in enumerate(((aQ0, aK0, 0), (aQ1, aK1, 512))):
            for r in range(4): A(f"v_permlane32_swap_b32 {v(qa+r)}, {v(ka+r)}")
            vnext(vm_[3*j])
            for r in range(4): A(f"v_add_f32 {v(qa+r)}, {v(qa+r)}, {v(ka+r)}")
            vnext(vm_[3*j+1])
            A(f"v_cvt_pk_bf16_f32 {v(qa)}, {v(qa)}, {v(qa+1)}")
            A(f"v_cvt_pk_bf16_f32 {v(qa+1)}, {v(qa+2)}, {v(qa+3)}")
            A(f"ds_write_b64 {v(vXw)}, {v(qa,2)} offset:{off}", tag="xw")
            if off == 0: vnext(vm_[2])
        assert len(vq) <= 12
        kxs = [kx(i) for i in (0, 4, 1, 5)]
        rzl = [f"v_mov_b64 {v(RZ+i,2)}, -1" for i in (0, 2)]
        for _ in range(cfg.get("vb", 4)):
            vnext(1)
            if kxs: A(kxs.pop(0))
            if rzl: A(rzl.pop(0))
        for x in kxs: A(x)
        A.wait_tag("xw")
        A("s_barrier")
        ST(3)
        tr = lambda u, b: f"ds_read_b64_tr_b16 {v(vXB + 4*u + 2*b, 2)}, {v(vXr)} offset:{u*1024 + b*512}"
        rd = [tr(0, 0), tr(0, 1), tr(1, 0), tr(1, 1), tr(2, 0), tr(2, 1), kx(2), kx(6), tr(3, 0), tr(3, 1), kx(3), kx(7)]
        fl = [f"v_mov_b32 {v(vSM + r)}, {v(vNeg)}" for r in range(4)]
        for _ in range(2): A(rd.pop(0))
        k = 0
        while vq:
            vnext(1)
            for _ in range(2):
                if rd: A(rd.pop(0))
            if fl: A(fl.pop(0))
            if k in (w % 2, 3 + w % 2, 6 + w % 2) and rest2:
                for y in rest2.pop(0): A(y)
            k += 1
        assert not fl and not rest and not rd and not rest2
        prim = []
        for u in range(4):
            xb = v(vXB + 4*u, 4)
            prim += [f"v_mfma_f32_16x16x32_bf16 {v(vSM,4)}, {xb}, {xb}, {v(vSM,4)}",
                     f"v_mfma_f32_16x16x32_bf16 {v(vS0,4)}, {v(vKx + 4*u, 4)}, {xb}, {'0' if u == 0 else v(vS0,4)}",
                     f"v_mfma_f32_16x16x32_bf16 {v(vS1,4)}, {v(vKx + 16 + 4*u, 4)}, {xb}, {'0' if u == 0 else v(vS1,4)}"]
        A(f"s_xor_b32 {s(S_T0)}, {s(S_VL)}, 0x8000")
        pl32 = lambda a_, b_: f"v_permlane32_swap_b32 {v(a_)}, {v(b_)}"
        gaps = [[f"v_add_u32 v0, {s(S_T0)}, {v(vL16)}", f"v_xor_b32 {v(vKr)}, 0x2000, {v(vKr)}"],
                [f"ds_read_b128 {v(vVx, 4)}, v0", f"ds_read_b128 {v(vVx + 4, 4)}, v0 offset:1024", f"s_cmp_eq_u32 {s(S_STEP)}, 63"],
                [pl32(aV0, aV1)], [pl32(aV0+1, aV1+1)], [pl32(aV0+2, aV1+2)], [pl32(aV0+3, aV1+3)],
                [f"v_add_f32 {v(aV0+r)}, {v(aV0+r)}, {v(aV1+r)}" for r in (0, 1)],
                [f"v_add_f32 {v(aV0+r)}, {v(aV0+r)}, {v(aV1+r)}" for r in (2, 3)],
                [f"v_cvt_pk_bf16_f32 {v(vpa)}, {v(aV0)}, {v(aV0+1)}", f"v_cvt_pk_bf16_f32 {v(vpa+1)}, {v(aV0+2)}, {v(aV0+3)}"],
                [f"v_mov_b64 {v(vpb,2)}, {v(vpa,2)}", f"v_min_u32 {v(vVp)}, -2, {v(vpa)}"],
                [f"v_min_u32 {v(vVp+1)}, -2, {v(vpa+1)}"],
                [pl32(vpa, vpb), pl32(vpa+1, vpb+1)]]
        for x, gp in zip(prim, gaps):
            A(x)
            for y in gp: A(y)
        A("s_cbranch_scc1 L_team_done", flush=False)
        ST(4)
        tm = [72, 73, 74, 75, 100, 101]
        m = max3_tree(A, list(range(vSM, vSM + 12)), tm, op="v_max3_f32", op2="v_max_f32")
        tt = 102
        A(f"v_mov_b32 {v(tt)}, {v(m)}")
        A(f"v_permlane16_swap_b32 {v(m)}, {v(tt)}")
        A(f"v_max_f32 {v(m)}, {v(m)}, {v(tt)}")
        A(f"v_mov_b32 {v(tt)}, {v(m)}")
        A(f"v_permlane32_swap_b32 {v(m)}, {v(tt)}")
        A(f"v_max_f32 {v(m)}, {v(m)}, {v(tt)}")
        A(f"v_mul_f32 {v(m)}, {s(S_C)}, {v(m)}")
        vPx, vPm = 124, 72
        fmas = lambda base: [A(f"v_fma_f32 {v(base+r)}, {v(base+r)}, {s(S_C)}, -{v(m)}") for r in range(4)]
        exps = lambda base: [A(f"v_exp_f32 {v(base+r)}, {v(base+r)}") for r in range(4)]
        def cvt2(d, b):
            A(f"v_cvt_pk_bf16_f32 {v(d)}, {v(b)}, {v(b+1)}")
            A(f"v_cvt_pk_bf16_f32 {v(d+1)}, {v(b+2)}, {v(b+3)}")
        oa, ol, ob = aV0, vSM, vS0
        fmas(vSM); exps(vSM); cvt2(vPm, vSM)
        fmas(vS0)
        A(f"v_mfma_f32_16x16x16_bf16 {v(oa,4)}, {v(vpa,2)}, {v(vPm,2)}, 0")
        exps(vS0)
        A(f"v_mfma_f32_16x16x16_bf16 {v(ol,4)}, {v(vOnes,2)}, {v(vPm,2)}, 0")
        cvt2(vPx, vS0)
        fmas(vS1)
        A(f"v_mfma_f32_16x16x16_bf16 {v(ob,4)}, {v(vpb,2)}, {v(vPm,2)}, 0")
        A(f"v_exp_f32 {v(vS1)}, {v(vS1)}"); A(f"v_exp_f32 {v(vS1+1)}, {v(vS1+1)}")
        A(f"v_mfma_f32_16x16x16_bf16 {v(ol,4)}, {v(vOnes,2)}, {v(vPx,2)}, {v(ol,4)}")
        A(f"v_exp_f32 {v(vS1+2)}, {v(vS1+2)}"); A(f"v_exp_f32 {v(vS1+3)}, {v(vS1+3)}")
        cvt2(vPx + 2, vS1)
        ST(5)
        A(f"v_mfma_f32_16x16x16_bf16 {v(ol,4)}, {v(vOnes,2)}, {v(vPx+2,2)}, {v(ol,4)}")
        for x in wread(0): A(x)
        A(f"v_mfma_f32_16x16x32_bf16 {v(oa,4)}, {v(vVx,4)}, {v(vPx,4)}, {v(oa,4)}")
        for x in wread(1): A(x)
        A(f"v_mfma_f32_16x16x32_bf16 {v(ob,4)}, {v(vVx+4,4)}, {v(vPx,4)}, {v(ob,4)}")
        for x in wread(2): A(x)
        for x in kv_adv: A(x)
        rl = 102
        A(f"v_rcp_f32 {v(rl)}, {v(ol)}")
        pk = 72
        for k, o_ in enumerate((oa, ob)):
            if k == 0:
                for r in range(4): A(f"v_mul_f32 {v(o_+r)}, {v(o_+r)}, {v(rl)}")
            else:
                A(f"v_pk_mul_f32 {v(o_,2)}, {v(o_,2)}, {v(rl,2)} op_sel_hi:[1,0]")
                A(f"v_pk_mul_f32 {v(o_+2,2)}, {v(o_+2,2)}, {v(rl,2)} op_sel_hi:[1,0]")
            cvt2(pk + 2*k, o_)
            A(f"ds_write_b64 {v(vOw)}, {v(pk+2*k,2)} offset:{32*k}", tag="ow")
        for r in (84, 86, 76, 78, 80, 82, 120, 122): A(f"v_mov_b64 {v(r,2)}, 0")
        A(flag_load(FL))
        A("s_waitcnt vmcnt(1)")
        A.wait_tag("ow")
        A("s_barrier")
        for u in range(4): A(f"ds_read_b128 {v(oA[u],4)}, {v(vOr)} offset:{u*64}")
        ST(6)
        for x in wread(3) + wread(4) + wread(5): A(x)
        cv = lambda d, p, hf: f"v_cvt_pk_bf16_f32 {v(d)}, {v(accs[p] + 2*hf)}, {v(accs[p] + 2*hf + 1)}"
        pst = lambda r, hp: f"buffer_store_dwordx4 {v(r,4)}, {v(vPst)}, {s(S_WS,4)}, {s(S_PST)} offen offset:{hp*1024}"
        t8fill = {7: [cv(72, 0, 0)], 8: [cv(73, 0, 1)], 10: [cv(74, 1, 0)], 11: [cv(75, 1, 1), pst(72, 0)]}
        for k in range(16):
            A(smf(accs[k // 4], oA[k % 4], wreg(k)))
            if k >= 6 and k - 6 + NB < 10:
                for x in wread(k - 6 + NB): A(x)
            for x in t8fill.get(k, []): A(x)
        for x in (cv(84, 2, 0), cv(85, 2, 1), cv(86, 3, 0), cv(87, 3, 1), pst(84, 1)): A(x)
        ST(7)
        if diag: A("s_memrealtime s[100:101]")
        if D9[w]: A.nop(D9[w])
        pl = 40
        pll = [f"buffer_load_dwordx4 {v(pl+4*i,4)}, {v(vPld)}, {s(S_WS,4)}, {s(S_PL+i)} offen sc1" for i in range(2)]
        for x in pll: A(x)
        A(f"s_mov_b32 {s(S_LATE)}, 0")
        flag_check(FL, f"_{w}"); flag_retry(FL, f"_{w}")
        for r in range(aQ0, aV1 + 4, 2):
            A(f"v_mov_b64 {v(r,2)}, 0")
        A(f"L_t9_{w}:")
        def t9_tail(w=w, pll=pll):
            A(f"L_t9s_{w}:")
            A.assume(vm=[], lg=[])
            r = max3_tree(A, list(range(pl, pl + 8)), list(range(60, 64)))
            A(f"v_cmp_eq_u32 vcc, -1, {v(r)}")
            A(f"s_cbranch_vccz L_t9ok_{w}")
            for x in pll: A(x)
            A(f"s_mov_b32 {s(S_LATE)}, 1")
            if diag: A(f"s_add_u32 {s(S_N9)}, {s(S_N9)}, 1")
            spin_check(A)
            A(f"s_branch L_t9_{w}")
        tails.append(t9_tail)
        d = 48; x = 52
        A(f"v_mfma_f32_16x16x32_bf16 {v(d,4)}, {v(vSel,4)}, {v(pl,4)}, 0")
        A(f"v_mfma_f32_16x16x32_bf16 {v(d,4)}, {v(vSel,4)}, {v(pl+4,4)}, {v(d,4)}")
        dpp = lambda dst, src, ctl, bm: f"v_add_f32_dpp {v(dst)}, {v(src)}, {v(src)} {ctl} row_mask:0xf bank_mask:{bm:#x}"
        A(dpp(x, d, "row_ror:8", 0x3))
        A(dpp(x+1, d+1, "row_ror:8", 0x3))
        A(dpp(x, d+2, "row_ror:8", 0xc))
        A(dpp(x+1, d+3, "row_ror:8", 0xc))
        A(dpp(x+2, x, "row_shl:4", 0x5))
        A(dpp(x+2, x+1, "row_shr:4", 0xa))
        A(f"v_cmp_u_f32 vcc, {v(x+2)}, {v(x+2)}")
        A(f"v_mov_b32 {v(x+3)}, {v(x+2)}")
        A(f"s_cbranch_vccnz L_t9s_{w}", flush=False)
        A(f"L_t9ok_{w}:")
        A(f"s_add_u32 {s(S_STEP)}, {s(S_STEP)}, 1")
        A(f"v_permlane16_swap_b32 {v(x+2)}, {v(x+3)}")
        A(f"v_cvt_pk_bf16_f32 {v(x+2)}, {v(x+2)}, {v(x+3)}")
        A(f"v_min_u32 {v(x+2)}, -2, {v(x+2)}")
        A(f"buffer_store_dword {v(x+2)}, {v(vMst)}, {s(S_WS,4)}, {s(S_MA)} offen")
        ST(8)
        if diag:
            A("s_waitcnt lgkmcnt(0)")
            for k in range(9): A(f"v_writelane_b32 v64, {s(80+2*k)}, {k}")
            A(f"v_writelane_b32 v64, {s(S_N1)}, 9")
            A(f"v_writelane_b32 v64, {s(S_N9)}, 10")
            A(f"v_writelane_b32 v64, s100, 11")
            A(f"""
            s_lshl_b32 {s(S_T0)}, {s(h)}, 2
            s_add_u32 {s(S_T0)}, {s(S_T0)}, {s(S_WAVE)}
            s_lshl_b32 {s(S_T0)}, {s(S_T0)}, 6
            s_add_u32 {s(S_T0)}, {s(S_T0)}, {s(S_STEP)}
            s_lshl_b32 {s(S_T0)}, {s(S_T0)}, 6
            s_add_u32 {s(S_T0)}, {s(S_T0)}, {WS_DBG - 64:#x}
            v_lshrrev_b32 v65, 2, {v(vL16)}
            s_mov_b32 {s(S_N1)}, 1
            s_mov_b32 {s(S_N9)}, 1
            s_mov_b64 exec, 0xffff
            buffer_store_dword v64, v65, {s(S_WS,4)}, {s(S_T0)} offen
            s_mov_b64 exec, -1
            """)
        ST(0)
        if D1[w]:
            A(f"s_cmp_eq_u32 {s(S_LATE)}, 1")
            A(f"s_cbranch_scc1 L_top_{w}", flush=False)
            A.nop(D1[w])
        A(f"s_branch L_top_{w}", flush=False)
    for f in tails: f()
    A("L_team_done:")
    A.assume(vm=[], lg=[])
    A(f"s_lshl_b32 {s(S_T0)}, {s(S_WAVE)}, 10")
    A(f"v_add_u32 v45, {s(S_T0)}, {v(vXr)}")
    l1, l2 = km_pub_list(None, 40, 44)
    for x in l1 + l2: A(x)
    A("s_endpgm")
```

```python
from common import *
from team import weight_loader

S_ID = 24
S_A, S_B, S_Cc = 8, 12, 16
S_T0, S_T1, S_T2 = 70, 71, 72
TAILSEG = 61

def fill_regs(A, r, n, val):
    for i in range(0, n, 2): A(f"v_mov_b64 {v(r+i,2)}, {val}")

def gen_workers(A, cfg):
    roles = cfg.get("roles", "PBCDRLM")
    A(f"""
    s_sub_u32 {s(S_T0)}, {s(S_XCC)}, 1
    s_cmp_eq_u32 {s(S_T0)}, 6
    s_cselect_b32 {s(S_T1)}, 12, 14
    s_cmp_lt_u32 {s(S_TICK)}, {s(S_T1)}
    s_cbranch_scc0 L_others
    s_mul_i32 {s(S_ID)}, {s(S_T0)}, 14
    s_add_u32 {s(S_ID)}, {s(S_ID)}, {s(S_TICK)}
    """)
    if "P" in roles: gen_P(A, cfg)
    else: A("s_endpgm")
    A(f"""
L_others:
    s_mul_i32 {s(S_ID)}, {s(S_T0)}, 18
    s_add_u32 {s(S_ID)}, {s(S_ID)}, {s(S_TICK)}
    s_sub_u32 {s(S_ID)}, {s(S_ID)}, {s(S_T1)}
    """)
    gen_others(A, cfg, roles)

def gen_P(A, cfg):
    HB = 131072
    RING = 0
    vL16, vHw, vHr, vKw, vVm, vQr, vOst = 1, 2, 3, 7, 8, 9, 10
    vHs = 12
    vHf = 44
    aK, aV = 60, 76
    aQ = 60
    pK, pV, pQ = 92, 100, 108
    W_Q = 128
    S_H, S_C3, S_N, S_NT = 25, 26, 27, 28
    S_SEG = 29
    S_HO, S_KV, S_FLO, S_RW, S_RR, S_ATT, S_KMO, S_VMO, S_OO = 30, 64, 65, 66, 67, 68, 69, 73, 74
    S_MASK = 80
    S_SC, S_L2E = 98, 99
    wk = lambda n, ks: a((n*16 + ks)*4, 4)
    wv = lambda n, ks: a(128 + (n*16 + ks)*4, 4)
    wq = lambda n, ks: v(W_Q + (n*16 + ks)*4, 4)
    A("L_P:")
    srd(A, S_A, P_WK, 0x400000); srd(A, S_B, P_WV, 0x400000); srd(A, S_Cc, P_WQ, 0x400000)
    L, g, n16, rp, c, t0, t1, t2 = range(112, 120)
    lane_consts(A, L, g, n16, rp, c)
    A(f"""
    s_mul_hi_u32 {s(S_H)}, {s(S_ID)}, 0x55555556
    s_mul_i32 {s(S_T0)}, {s(S_H)}, 3
    s_sub_u32 {s(S_C3)}, {s(S_ID)}, {s(S_T0)}
    s_cmp_eq_u32 {s(S_C3)}, 0
    s_cselect_b32 {s(S_NT)}, 22, 21
    v_lshlrev_b32 {v(vL16)}, 4, {v(L)}
    s_and_b32 {s(S_T0)}, {s(S_WAVE)}, 1
    s_lshl_b32 {s(S_T0)}, {s(S_T0)}, 12
    s_lshr_b32 {s(S_T1)}, {s(S_WAVE)}, 1
    s_lshl_b32 {s(S_T1)}, {s(S_T1)}, 11
    s_add_u32 {s(S_T2)}, {s(S_T0)}, {s(S_T1)}
    v_add_u32 {v(vOst)}, {s(S_T2)}, {v(vL16)}
    v_add_u32 {v(vQr)}, {s(S_T0)}, {v(vL16)}
    s_lshl_b32 {s(S_T0)}, {s(S_C3)}, 5
    s_add_u32 {s(S_T0)}, {s(S_T0)}, {s(S_H)}
    s_lshl_b32 {s(S_KV)}, {s(S_T0)}, 13
    s_mov_b32 {s(S_ATT)}, {s(S_KV)}
    s_lshl_b32 {s(S_FLO)}, {s(S_H)}, 6
    s_lshl_b32 {s(S_T1)}, {s(S_C3)}, 2
    s_add_u32 {s(S_FLO)}, {s(S_FLO)}, {s(S_T1)}
    s_add_u32 {s(S_FLO)}, {s(S_FLO)}, {WS_FLG:#x}
    """)
    fill_regs(A, 120, 4, -1)
    A(f"s_add_u32 {s(S_T0)}, {s(S_KV)}, {WS_O:#x}")
    for q in range(2): A(f"buffer_store_dwordx4 v[120:123], {v(vOst)}, {s(S_WS,4)}, {s(S_T0)} offen offset:{q*1024} sc1")
    A("v_mov_b32 v124, 0")
    A(f"buffer_store_dword v124, off, {s(S_WS,4)}, {s(S_FLO)} sc1")
    vD, vT, vTmp = 12, [14, 15], 16
    S_ROW, S_LB = 80, 81
    A(f"""
    v_lshlrev_b32 {v(t0)}, 5, {v(g)}
    v_lshlrev_b32 {v(t1)}, 4, {v(n16)}
    v_xor_b32 {v(t0)}, {v(t0)}, {v(t1)}
    v_lshl_add_u32 {v(vD)}, {v(g)}, 13, {v(t0)}
    v_xor_b32 {v(vD+1)}, 128, {v(vD)}
    v_lshl_add_u32 {v(t0)}, {v(g)}, 3, {v(rp)}
    v_and_b32 {v(t1)}, 1, {v(g)}
    v_lshl_or_b32 {v(t1)}, {v(t1)}, 2, {v(rp)}
    v_lshlrev_b32 {v(t1)}, 5, {v(t1)}
    v_lshl_or_b32 {v(t1)}, {v(c)}, 3, {v(t1)}
    s_lshl_b32 {s(S_T0)}, {s(S_WAVE)}, 6
    v_xor_b32 {v(t1)}, {s(S_T0)}, {v(t1)}
    v_lshl_add_u32 {v(vT[0])}, {v(t0)}, 8, {v(t1)}
    v_xor_b32 {v(vT[1])}, 32, {v(vT[0])}
    s_lshl_b32 {s(S_ROW)}, {s(S_WAVE)}, 18
    s_lshl_b32 {s(S_T0)}, {s(S_H)}, 8
    s_add_u32 {s(S_ROW)}, {s(S_ROW)}, {s(S_T0)}
    s_lshl_b32 {s(S_LB)}, {s(S_WAVE)}, 13
    """)
    def issue(srdreg, ch):
        def f(slot):
            for i in range(8):
                A(f"s_add_u32 m0, {s(S_LB)}, {slot*32768 + i*1024}")
                A(f"s_add_u32 {s(S_T0)}, {s(S_ROW)}, {(128*ch + 4*i)*8192:#x}")
                A(f"buffer_load_dwordx4 {v(vD + ((i >> 1) & 1))}, {s(srdreg,4)}, {s(S_T0)} offen lds")
        return f
    def cons(kind, base, ch):
        def f(slot):
            hi = slot >= 2
            if hi:
                A(f"v_add_u32 {v(vTmp)}, 0x10000, {v(vT[0])}")
                A(f"v_add_u32 {v(vTmp+1)}, 0x10000, {v(vT[1])}")
            for k4 in range(4):
                for n in range(2):
                    for b in range(2):
                        reg = base + (n*16 + 4*ch + k4)*4 + 2*b
                        A(f"ds_read_b64_tr_b16 {kind(reg, 2)}, {v(vTmp + n if hi else vT[n])} offset:{(32*k4 + 4*b)*256 + (slot % 2)*32768}")
        return f
    chunks = [(issue(S_A, ch), cons(a, 0, ch)) for ch in range(4)] + [(issue(S_B, ch), cons(a, 128, ch)) for ch in range(4)] \
           + [(issue(S_Cc, ch), cons(v, W_Q, ch)) for ch in range(4)]
    def consts():
        A(f"""
        s_and_b32 {s(S_T0)}, {s(S_WAVE)}, 1
        s_lshl_b32 {s(S_T0)}, {s(S_T0)}, 7
        s_lshl_b32 {s(S_T1)}, {s(S_WAVE)}, 13
        s_add_u32 {s(S_T1)}, {s(S_T1)}, {HB}
        v_xor_b32 {v(t0)}, {s(S_T0)}, {v(vL16)}
        v_add_u32 {v(vHw)}, {s(S_T1)}, {v(t0)}
        v_xor_b32 {v(t0)}, {v(g)}, {v(n16)}
        v_lshlrev_b32 {v(t0)}, 4, {v(t0)}
        v_lshl_add_u32 {v(t0)}, {v(n16)}, 10, {v(t0)}
        v_add_u32 {v(vHr)}, {HB}, {v(t0)}
        v_xor_b32 {v(vHr+1)}, 64, {v(vHr)}
        v_xor_b32 {v(vHr+2)}, 128, {v(vHr)}
        v_xor_b32 {v(vHr+3)}, 192, {v(vHr)}
        s_lshl_b32 {s(S_T0)}, {s(S_WAVE)}, 10
        v_add_u32 {v(vKw)}, {s(S_T0)}, {v(vL16)}           ; fragment (m, u = w): + m*4096
        s_lshr_b32 {s(S_T0)}, {s(S_WAVE)}, 1
        s_lshl_b32 {s(S_T0)}, {s(S_T0)}, 10
        v_and_b32 {v(t0)}, 31, {v(L)}
        v_lshlrev_b32 {v(t0)}, 3, {v(t0)}
        v_add_u32 {v(vVm)}, {s(S_T0)}, {v(t0)}
        s_and_b32 {s(S_T0)}, {s(S_WAVE)}, 1
        s_lshl_b32 {s(S_T0)}, {s(S_T0)}, 4
        v_lshlrev_b32 {v(t0)}, 2, {v(g)}
        v_sub_u32 {v(t0)}, {v(n16)}, {v(t0)}
        v_add_u32 {v(t0)}, {s(S_T0)}, {v(t0)}
        """)
    c0 = chunks[0][1]
    def c0w(slot):
        arrive_init(A, vTmp)
        c0(slot)
        consts()
    chunks[0] = (chunks[0][0], c0w)
    hload = lambda i: f"buffer_load_dwordx4 {v(vHs + 4*i, 4)}, {v(vL16)}, {s(S_WS,4)}, {s(S_HO if i < 4 else S_T2)} offen offset:{(i % 4)*1024} sc1"
    def h_stage_write():
        for i in range(8):
            A(f"v_xor_b32 v11, {i*16}, {v(vHw)}")
            A(f"ds_write_b128 v11, {v(vHs + 4*i, 4)} offset:{i*1024}", tag="hw")
    n = len(chunks)
    for i in range(3): chunks[i][0](i % 4)
    for i in range(8):
        A(f"s_waitcnt vmcnt(16) lgkmcnt(0)")
        A("s_barrier")
        chunks[i + 3][0]((i + 3) % 4)
        chunks[i][1](i % 4)
    A(f"""
    s_lshl_b32 {s(S_HO)}, {s(S_C3)}, 15
    s_lshl_b32 {s(S_T0)}, {s(S_WAVE)}, 13
    s_add_u32 {s(S_HO)}, {s(S_HO)}, {s(S_T0)}
    s_add_u32 {s(S_HO)}, {s(S_HO)}, {WS_H:#x}
    s_add_u32 {s(S_T2)}, {s(S_HO)}, 4096
    """)
    wait_init(A, cfg, 120, S_T0)
    first = [hload(i).replace(v(vHs + 4*i, 4), v(60 + 4*i, 4)) for i in range(8)]
    poll(A, first, list(range(60, 92)), list(range(92, 108)), sleep=2)
    for i in range(8):
        A(f"v_xor_b32 v11, {i*16}, {v(vHw)}")
        A(f"ds_write_b128 v11, {v(60 + 4*i, 4)} offset:{i*1024}")
    A(f"s_mov_b32 {s(S_N)}, 0")
    A(f"s_mov_b32 {s(S_RW)}, 0")
    A("s_waitcnt lgkmcnt(0)")
    A("s_barrier")

    hf = lambda ks, m: f"ds_read_b128 {v(vHf + 8*(ks % 2) + 4*m, 4)}, {v(vHr + (ks & 3))} offset:{(ks >> 2)*256 + m*16384}"
    hr = lambda ks, m: v(vHf + 8*(ks % 2) + 4*m, 4)
    def mm(acc, x, y, ks): return f"v_mfma_f32_16x16x32_bf16 {v(acc,4)}, {x}, {y}, {'0' if ks == 0 else v(acc,4)}"
    def pack(dst, lo, hi):
        for j, src in enumerate((lo, lo + 2, hi, hi + 2)):
            A(f"v_cvt_pk_bf16_f32 {v(dst + j)}, {v(src)}, {v(src + 1)}")
    def kv_part(fillers):
        for m in range(2): A(hf(0, m))
        for ks in range(16):
            if ks < 15:
                for m in range(2): A(hf(ks + 1, m))
            for m in range(2):
                for n_ in range(2):
                    A(mm(aK + (m*2 + n_)*4, wk(n_, ks), hr(ks, m), ks))
                    A(mm(aV + (n_*2 + m)*4, hr(ks, m), wv(n_, ks), ks))
            if fillers:
                for x in fillers.pop(0): A(x)
        for m in range(2): A(hf(0, m))
        for m in range(2): pack(pK + 4*m, aK + 8*m, aK + 8*m + 4)
        for n_ in range(2): pack(pV + 4*n_, aV + 8*n_, aV + 8*n_ + 4)
        A(f"s_add_u32 {s(S_T0)}, {s(S_KV)}, {WS_KX:#x}")
        A(f"s_add_u32 {s(S_T1)}, {s(S_T0)}, 4096")
        A(f"buffer_store_dwordx4 {v(pK,4)}, {v(vKw)}, {s(S_WS,4)}, {s(S_T0)} offen sc1")
        A(f"buffer_store_dwordx4 {v(pK+4,4)}, {v(vKw)}, {s(S_WS,4)}, {s(S_T1)} offen sc1")
        A(f"s_lshl_b32 {s(S_T1)}, {s(S_WAVE)}, 10")
        A(f"s_add_u32 {s(S_T0)}, {s(S_KV)}, {s(S_T1)}")
        A(f"s_add_u32 {s(S_T0)}, {s(S_T0)}, {WS_VX:#x}")
        for n_ in range(2): A(f"buffer_store_dwordx4 {v(pV + 4*n_,4)}, {v(vKw)}, {s(S_WS,4)}, {s(S_T0)} offen offset:{n_*1024} sc1")
    def prefill_list():
        return [[f"v_mov_b64 v[120:121], -1", f"v_mov_b64 v[122:123], -1",
                 f"s_lshr_b32 {s(S_T0)}, {s(S_KV)}, 1", f"s_add_u32 {s(S_T0)}, {s(S_T0)}, {WS_KM:#x}"],
                [f"buffer_store_dwordx4 v[120:123], {v(vKw)}, {s(S_WS,4)}, {s(S_T0)} offen sc1",
                 f"s_lshr_b32 {s(S_T0)}, {s(S_KV)}, 2", f"s_add_u32 {s(S_T0)}, {s(S_T0)}, {WS_VM:#x}", f"v_lshrrev_b32 v11, 1, {v(vKw)}"],
                [f"buffer_store_dwordx2 v[120:121], v11, {s(S_WS,4)}, {s(S_T0)} offen sc1",
                 f"s_add_u32 {s(S_T0)}, {s(S_KV)}, {WS_O:#x}"],
                [f"buffer_store_dwordx4 v[120:123], {v(vOst)}, {s(S_WS,4)}, {s(S_T0)} offen sc1"],
                [f"buffer_store_dwordx4 v[120:123], {v(vOst)}, {s(S_WS,4)}, {s(S_T0)} offen offset:1024 sc1"]]
    def publish_flag():
        lab = A.newlabel("L_pf")
        A("s_waitcnt vmcnt(0)")
        A("s_barrier")
        A(f"s_add_u32 {s(S_N)}, {s(S_N)}, 1")
        A(f"s_cmp_lg_u32 {s(S_WAVE)}, 0")
        A(f"s_cbranch_scc1 {lab}")
        A(f"v_mov_b32 v11, {s(S_N)}")
        A(f"buffer_store_dword v11, off, {s(S_WS,4)}, {s(S_FLO)} sc1")
        A(f"{lab}:")
    def q_part(fillers):
        for ks in range(16):
            if ks < 15:
                for m in range(2): A(hf(ks + 1, m))
            for m in range(2):
                for n_ in range(2): A(mm(aQ + (m*2 + n_)*4, wq(n_, ks), hr(ks, m), ks))
            if fillers:
                for x in fillers.pop(0): A(x)
        A(f"v_add_u32 v11, {s(S_RW)}, {v(vKw)}")
        for m in range(2): A(f"ds_write_b128 v11, {v(pK + 4*m, 4)} offset:{8192 + m*4096}")
        for m in range(2): pack(pQ + 4*m, aQ + 8*m, aQ + 8*m + 4)
        for m in range(2): A(f"ds_write_b128 v11, {v(pQ + 4*m, 4)} offset:{m*4096}")
        A(f"s_lshl_b32 {s(S_T0)}, {s(S_WAVE)}, 10")
        A(f"v_add_u32 v11, {s(S_T0)}, v11")
        for n_ in range(2): A(f"ds_write_b128 v11, {v(pV + 4*n_, 4)} offset:{16384 + n_*1024}")
        A(f"s_xor_b32 {s(S_RW)}, {s(S_RW)}, 24576")
        A(f"s_add_u32 {s(S_KV)}, {s(S_KV)}, {3*32*8192:#x}")
    next_h = [f"s_add_u32 {s(S_HO)}, {s(S_HO)}, {3*32768:#x}", f"s_add_u32 {s(S_T2)}, {s(S_HO)}, 4096"]

    pf = prefill_list()[:3]
    kv_part(pf)
    publish_flag()
    for i in range(8, 12):
        if i == 8:
            chunks[11][0](3)
        else:
            A(f"s_waitcnt vmcnt(0) lgkmcnt(0)") if i == 11 else None
            if i == 11: A("s_barrier")
        chunks[i][1](i % 4)
    for k in range(8):
        A(f"v_cmp_ge_i32 {s(S_MASK + 2*k, 2)}, {v(t0)}, {16*(k // 4) + k % 4}")
    A(f"s_mov_b32 {s(S_MASK + 16)}, 0")
    A(f"s_mov_b32 {s(S_MASK + 17)}, -1")
    A(f"s_mov_b32 {s(S_SC)}, 0x3db504f3")
    A(f"s_mov_b32 {s(S_L2E)}, 0x3fb8aa3b")
    A(f"s_mov_b32 {s(S_RR)}, 0")
    A("s_waitcnt lgkmcnt(0)")
    A("s_barrier")
    for m in range(2): A(hf(0, m))
    q_part([next_h] + [[hload(i)] for i in range(8)])

    A("L_P_loop:")
    A.assume(vm=[(v(vHs + 4*i, 4), None) for i in range(8)], lg=[])
    A(f"s_cmp_ge_u32 {s(S_N)}, {s(S_NT)}")
    A("s_cbranch_scc1 L_P_last")
    ok = A.newlabel("L_hok")
    A("s_waitcnt vmcnt(0)")
    r = max3_tree(A, list(range(vHs, vHs + 32)), list(range(60, 76)))
    A(f"v_cmp_eq_u32 vcc, -1, {v(r)}")
    A(f"s_cbranch_vccz {ok}")
    poll(A, [hload(i) for i in range(8)], list(range(vHs, vHs + 32)), list(range(60, 76)), sleep=2)
    A(f"{ok}:")
    A("s_waitcnt lgkmcnt(0)")
    A("s_barrier")
    h_stage_write()
    A("s_waitcnt lgkmcnt(0)")
    A("s_barrier")
    kv_part(prefill_list())
    publish_flag()
    q_part([next_h] + [[hload(i)] for i in range(8)])
    A("s_branch L_P_att")
    A("L_P_last:")
    A(f"s_add_u32 {s(S_N)}, {s(S_N)}, 1")
    A("s_waitcnt lgkmcnt(0)")
    A("s_barrier")
    A("L_P_att:")
    A.assume(vm=[(v(vHs + 4*i, 4), None) for i in range(8)], lg=[])
    Qf, Kf, S0, S1, SM, VM, Vf = 44, 60, 76, 80, 84, 88, 96
    tA = 112
    A(f"v_add_u32 v11, {s(S_RR)}, {v(vQr)}")
    for u in range(4): A(f"ds_read_b128 {v(Qf + 4*u, 4)}, v11 offset:{u*1024}")
    A(f"v_add_u32 v11, {s(S_RR)}, {v(vL16)}")
    for kt, Sx in ((0, S0), (1, S1)):
        for u in range(4): A(f"ds_read_b128 {v(Kf + 4*u, 4)}, v11 offset:{8192 + kt*4096 + u*1024}")
        for u in range(4): A(mm(Sx, v(Kf + 4*u, 4), v(Qf + 4*u, 4), u))
    A(f"s_lshr_b32 {s(S_T0)}, {s(S_WAVE)}, 1")
    A(f"s_lshl_b32 {s(S_T0)}, {s(S_T0)}, 12")
    A(f"v_add_u32 v11, {s(S_T0)}, v11")
    for t in range(4): A(f"ds_read_b128 {v(Vf + 4*t, 4)}, v11 offset:{16384 + t*1024}")
    A(f"s_lshr_b32 {s(S_KMO)}, {s(S_ATT)}, 1")
    A(f"s_add_u32 {s(S_KMO)}, {s(S_KMO)}, {WS_KM:#x}")
    A(f"s_lshr_b32 {s(S_VMO)}, {s(S_ATT)}, 2")
    A(f"s_add_u32 {s(S_VMO)}, {s(S_VMO)}, {WS_VM:#x}")
    A(f"s_add_u32 {s(S_OO)}, {s(S_ATT)}, {WS_O:#x}")
    def score_round(base, n):
        regs = list(range(base, base + n))
        rnd_list(A, regs, list(range(tA, tA + n // 2)))
        for i in regs: A(f"v_mul_f32 {v(i)}, {s(S_SC)}, {v(i)}")
        rnd_list(A, regs, list(range(tA, tA + n // 2)))
    score_round(S0, 8)
    A(f"v_mov_b32 {v(tA)}, 0xce6e0000")
    for k in range(8): A(f"v_cndmask_b32 {v(S0 + k)}, {v(tA)}, {v(S0 + k)}, {s(S_MASK + 2*k, 2)}")
    mx = 124
    A(f"v_max3_f32 {v(tA)}, {v(S0)}, {v(S0+1)}, {v(S0+2)}")
    A(f"v_max3_f32 {v(tA+1)}, {v(S0+3)}, {v(S0+4)}, {v(S0+5)}")
    A(f"v_max3_f32 {v(tA)}, {v(tA)}, {v(S0+6)}, {v(S0+7)}")
    A(f"v_max_f32 {v(mx)}, {v(tA)}, {v(tA+1)}")
    loads = [f"buffer_load_dwordx2 {v(VM + 2*t, 2)}, {v(vVm)}, {s(S_WS,4)}, {s(S_VMO)} offen offset:{(t // 2)*512 + (t % 2)*256} sc1" for t in range(4)]
    loads += [f"buffer_load_dwordx4 {v(Kf + 4*u, 4)}, {v(vL16)}, {s(S_WS,4)}, {s(S_KMO)} offen offset:{u*1024} sc1" for u in range(4)]
    poll(A, loads, list(range(Kf, Kf + 16)) + list(range(VM, VM + 8)), list(range(tA, tA + 12)),
         tail_cond=f"s_cmp_ge_u32 {s(S_ATT)}, {TAILSEG*32*8192:#x}", sleep=4)
    for u in range(4): A(mm(SM, v(Kf + 4*u, 4), v(Qf + 4*u, 4), u))
    score_round(SM, 4)
    A(f"v_mov_b32 {v(tA)}, 0xff61b1e6")
    for k in range(4): A(f"v_cndmask_b32 {v(SM + k)}, {v(tA)}, {v(SM + k)}, {s(S_MASK + 16, 2)}")
    A(f"v_max3_f32 {v(mx)}, {v(mx)}, {v(SM)}, {v(SM+1)}")
    A(f"v_max3_f32 {v(mx)}, {v(mx)}, {v(SM+2)}, {v(SM+3)}")
    for op in ("v_permlane16_swap_b32", "v_permlane32_swap_b32"):
        A(f"v_mov_b32 {v(tA)}, {v(mx)}")
        A(f"{op} {v(mx)}, {v(tA)}")
        A(f"v_max_f32 {v(mx)}, {v(mx)}, {v(tA)}")
    for k in range(12): A(f"v_sub_f32 {v(S0 + k)}, {v(S0 + k)}, {v(mx)}")
    for k in range(12): A(f"v_mul_f32 {v(S0 + k)}, {s(S_L2E)}, {v(S0 + k)}")
    for k in range(12): A(f"v_exp_f32 {v(S0 + k)}, {v(S0 + k)}")
    for k in range(0, 6, 2): A(f"v_pk_add_f32 {v(tA + k, 2)}, {v(S0 + k, 2)}, {v(S0 + 6 + k, 2)}")
    A(f"v_pk_add_f32 {v(tA, 2)}, {v(tA, 2)}, {v(tA + 2, 2)}")
    A(f"v_pk_add_f32 {v(tA, 2)}, {v(tA, 2)}, {v(tA + 4, 2)}")
    A(f"v_add_f32 {v(mx)}, {v(tA)}, {v(tA + 1)}")
    for op in ("v_permlane16_swap_b32", "v_permlane32_swap_b32"):
        A(f"v_mov_b32 {v(tA)}, {v(mx)}")
        A(f"{op} {v(mx)}, {v(tA)}")
        A(f"v_add_f32 {v(mx)}, {v(mx)}, {v(tA)}")
    A(f"v_rcp_f32 {v(mx)}, {v(mx)}")
    for k in range(0, 12, 2): A(f"v_pk_mul_f32 {v(S0 + k, 2)}, {v(S0 + k, 2)}, {v(mx, 2)} op_sel_hi:[1,0]")
    Px = tA
    for k in range(6): A(f"v_cvt_pk_bf16_f32 {v(Px + k)}, {v(S0 + 2*k)}, {v(S0 + 2*k + 1)}")
    oacc = Kf
    for t in range(4): A(f"v_mfma_f32_16x16x32_bf16 {v(oacc + 4*t, 4)}, {v(Vf + 4*t, 4)}, {v(Px, 4)}, 0")
    for t in range(4): A(f"v_mfma_f32_16x16x16_bf16 {v(oacc + 4*t, 4)}, {v(VM + 2*t, 2)}, {v(Px + 4, 2)}, {v(oacc + 4*t, 4)}")
    for q in range(2):
        pack(S0 + 4*q, oacc + 8*q, oacc + 8*q + 4)
        for j in range(4): A(f"v_min_u32 {v(S0 + 4*q + j)}, -2, {v(S0 + 4*q + j)}")
        A(f"buffer_store_dwordx4 {v(S0 + 4*q, 4)}, {v(vOst)}, {s(S_WS,4)}, {s(S_OO)} offen offset:{q*1024} sc1")
    A(f"s_add_u32 {s(S_ATT)}, {s(S_ATT)}, {3*32*8192:#x}")
    A(f"s_xor_b32 {s(S_RR)}, {s(S_RR)}, 24576")
    A(f"s_cmp_le_u32 {s(S_N)}, {s(S_NT)}")
    A("s_cbranch_scc1 L_P_loop")
    A("s_endpgm")

def gen_others(A, cfg, roles):
    vL16 = 1
    L, g, n16, rp, c, t0, t1, t2 = range(2, 10)
    lane_consts(A, L, g, n16, rp, c)
    A(f"v_lshlrev_b32 {v(vL16)}, 4, {v(L)}")
    A("v_mov_b32 v10, 0")
    fill_regs(A, 12, 4, -1)
    S_ROLE, S_HROW = 25, 26
    A(f"""
    s_lshl_b32 {s(S_HROW)}, {s(S_ID)}, 2
    s_add_u32 {s(S_HROW)}, {s(S_HROW)}, {s(S_WAVE)}
    s_lshl_b32 {s(S_HROW)}, {s(S_HROW)}, 12
    s_add_u32 {s(S_T0)}, {s(S_HROW)}, {WS_H:#x}
    """)
    if "L" in roles:
        for i in range(4): A(f"buffer_store_dwordx4 v[12:15], {v(vL16)}, {s(S_WS,4)}, {s(S_T0)} offen offset:{i*1024} sc1")
    if "M" in roles:
        lab = A.newlabel("L_nm")
        A(f"s_cmp_lt_u32 {s(S_ID)}, 80")
        A(f"s_cbranch_scc1 {lab}")
        A(f"s_lshl_b32 {s(S_T0)}, {s(S_ID)}, 8")
        A(f"s_add_u32 {s(S_T0)}, {s(S_T0)}, {WS_MOD - 80*256:#x}")
        A(f"v_lshlrev_b32 {v(t0)}, 2, {v(L)}")
        A(f"buffer_store_dword v12, {v(t0)}, {s(S_WS,4)}, {s(S_T0)} offen sc1")
        A(f"{lab}:")
    R = {"B": RoleB(A, cfg), "C": RoleC(A, cfg), "D": RoleD(A, cfg), "R": RoleR(A, cfg)}
    bounds = [("B", 32), ("C", 75), ("D", 107), ("R", 123)]
    def dispatch(stage):
        for name, hi in bounds:
            A(f"s_cmp_lt_u32 {s(S_ID)}, {hi}")
            A(f"s_cbranch_scc1 L_{name}_{stage}")
    dispatch("start")
    A("s_waitcnt vmcnt(0)")
    A("s_branch L_common")
    for name, hi in bounds:
        A(f"L_{name}_start:")
        A.assume(vm=[], lg=[])
        if name in roles: R[name].start()
        else: A("s_waitcnt vmcnt(0)")
        A("s_branch L_common")
    A("L_common:")
    A.assume(vm=[], lg=[])
    A("s_barrier")
    arrive_init(A, 16)
    X = 64
    if "L" in roles:
        srd(A, S_A, P_X, 0x200000)
        for i in range(4): A(f"buffer_load_dwordx4 {v(100 + 4*i, 4)}, {v(vL16)}, {s(S_A,4)}, {s(S_HROW)} offen offset:{i*1024}")
    if "M" in roles: gen_mod(A, cfg, L, g, n16, rp, c, t0, t1)
    if "L" in roles:
        for i in range(4): unpack(A, X + 8*i, 100 + 4*i, 4)
        mb = [96, 97, 98, 99]; ri = [116, 117, 118, 119]
        ln_stats(A, [X + 8*i for i in range(4)], mb, ri, [20, 30, 40, 50])
        wait_init(A, cfg, 16, S_T0)
        A(f"v_lshlrev_b32 {v(t0)}, 5, {v(L)}")
        A(f"s_mov_b32 {s(S_T0)}, {WS_MOD:#x}")
        loads = [f"buffer_load_dwordx4 {v(20 + 4*i, 4)}, {v(t0)}, {s(S_WS,4)}, {s(S_T0)} offen offset:{(i // 2)*2048 + (i % 2)*16} sc1" for i in range(4)]
        poll(A, loads, list(range(20, 36)), list(range(36, 44)), tail_cond="s_cmp_eq_u32 0, 0")
        for i in range(8): A(f"v_add_f32 {v(28 + i)}, 1.0, {v(28 + i)}")
        rnd_list(A, list(range(28, 36)), list(range(36, 40)))
        A(f"s_add_u32 {s(S_T0)}, {s(S_HROW)}, {WS_H:#x}")
        for i in range(4):
            ln_apply(A, X + 8*i, mb[i], ri[i], 28, 20, 40 + 4*i, 36)
            A(f"buffer_store_dwordx4 {v(40 + 4*i, 4)}, {v(vL16)}, {s(S_WS,4)}, {s(S_T0)} offen offset:{i*1024} sc1")
    else:
        wait_init(A, cfg, 16, S_T0)
    dispatch("main")
    A("s_endpgm")
    for name, hi in bounds:
        A(f"L_{name}_main:")
        A.assume(vm=[], lg=[])
        if name in roles:
            R[name].stage(); R[name].main()
        A("s_endpgm")

MOD_LDS = 147456
def gen_mod(A, cfg, L, g, n16, rp, c, t0, t1):
    done = A.newlabel("L_modx")
    A(f"s_cmp_lt_u32 {s(S_ID)}, 80")
    A(f"s_cbranch_scc1 {done}")
    srd(A, S_B, P_C, 1024); srd(A, S_Cc, P_WMOD, 512*6144)
    W, Cv, acc, u = 128, 20, 40, 48
    A(f"""
    v_lshrrev_b32 {v(t0)}, 3, {v(L)}
    v_lshlrev_b32 {v(t1)}, 5, {v(t0)}
    s_lshl_b32 {s(S_T0)}, {s(S_WAVE)}, 8
    buffer_load_dwordx4 v[56:59], {v(t1)}, {s(S_B,4)}, {s(S_T0)} offen
    buffer_load_dwordx4 v[60:63], {v(t1)}, {s(S_B,4)}, {s(S_T0)} offen offset:16
    v_mul_u32_u24 {v(t0)}, {16*6144}, {v(t0)}
    v_and_b32 {v(t1)}, 7, {v(L)}
    v_lshl_add_u32 {v(t0)}, {v(t1)}, 4, {v(t0)}
    s_mul_i32 {s(S_T0)}, {s(S_WAVE)}, {128*6144}
    s_sub_u32 {s(S_T1)}, {s(S_ID)}, 80
    s_lshl_b32 {s(S_T1)}, {s(S_T1)}, 7
    s_add_u32 {s(S_T0)}, {s(S_T0)}, {s(S_T1)}
    """)
    for i in range(16):
        A(f"buffer_load_dwordx4 {v(W + 4*i, 4)}, {v(t0)}, {s(S_Cc,4)}, {s(S_T0)} offen")
        A(f"s_add_u32 {s(S_T0)}, {s(S_T0)}, 6144")
    unpack(A, Cv, 56, 8)
    for half in range(2):
        rr = range(8*half, 8*half + 8)
        for i in rr: A(f"v_mul_f32 {v(u + i % 8)}, 0xbfb8aa3b, {v(Cv + i)}")
        for i in rr: A(f"v_exp_f32 {v(u + i % 8)}, {v(u + i % 8)}")
        for i in rr: A(f"v_add_f32 {v(u + i % 8)}, 1.0, {v(u + i % 8)}")
        for i in rr: A(f"v_rcp_f32 {v(u + i % 8)}, {v(u + i % 8)}")
        for i in rr: A(f"v_mul_f32 {v(Cv + i)}, {v(Cv + i)}, {v(u + i % 8)}")
    rnd_list(A, list(range(Cv, Cv + 16)), list(range(u, u + 8)))
    for i in range(16):
        unpack(A, u, W + 4*i, 4)
        for j in range(8):
            if i == 0: A(f"v_mul_f32 {v(acc + j)}, {v(Cv)}, {v(u + j)}")
            else: A(f"v_fmac_f32 {v(acc + j)}, {v(Cv + i)}, {v(u + j)}")
    A(f"""
    s_lshl_b32 {s(S_T0)}, {s(S_WAVE)}, 11
    s_add_u32 {s(S_T0)}, {s(S_T0)}, {MOD_LDS}
    v_lshlrev_b32 {v(t0)}, 5, {v(L)}
    v_add_u32 {v(t0)}, {s(S_T0)}, {v(t0)}
    ds_write_b128 {v(t0)}, {v(acc,4)}
    ds_write_b128 {v(t0)}, {v(acc+4,4)} offset:16
    s_waitcnt lgkmcnt(0)
    s_barrier
    s_cmp_lg_u32 {s(S_WAVE)}, 0
    s_cbranch_scc1 {done}
    v_lshlrev_b32 {v(t0)}, 2, {v(L)}
    v_add_u32 {v(t1)}, {MOD_LDS}, {v(t0)}
    """)
    for i in range(32): A(f"ds_read_b32 {v(W + i)}, {v(t1)} offset:{i*256}")
    for st in (16, 8, 4, 2):
        for i in range(0, st, 2): A(f"v_pk_add_f32 {v(W + i, 2)}, {v(W + i, 2)}, {v(W + st + i, 2)}")
    A(f"v_add_f32 {v(W)}, {v(W)}, {v(W + 1)}")
    rnd_one(A, W)
    A(f"s_lshl_b32 {s(S_T0)}, {s(S_ID)}, 8")
    A(f"s_add_u32 {s(S_T0)}, {s(S_T0)}, {WS_MOD - 80*256:#x}")
    A(f"buffer_store_dword {v(W)}, {v(t0)}, {s(S_WS,4)}, {s(S_T0)} offen sc1")
    A(f"{done}:")
    A.assume(vm=[(v(100 + 4*i, 4), None) for i in range(4)], lg=[])

def load_mod(A, dst, which, col_reg, tmp):
    A(f"s_mov_b32 {s(S_T0)}, {WS_MOD + which*2048:#x}")
    loads = [f"buffer_load_dwordx4 {v(dst + 4*i, 4)}, {v(col_reg)}, {s(S_WS,4)}, {s(S_T0)} offen offset:{i*16} sc1" for i in range(2)]
    poll(A, loads, list(range(dst, dst + 8)), list(range(tmp, tmp + 4)), tail_cond="s_cmp_eq_u32 0, 0")

class Role:
    vL16 = 1
    L, g, n16, rp, c, t0, t1, t2 = range(2, 10)
    def __init__(self, A, cfg): self.A = A; self.cfg = cfg

class RoleB(Role):
    S_SEG, S_OI, S_PO, S_LBUF = 27, 28, 29, 30
    vPst = 10
    def start(self):
        A = self.A; L, g, n16, rp, c, t0, t1, t2 = range(2, 10)
        A(f"""
        s_and_b32 {s(S_T0)}, {s(S_ID)}, 3
        s_lshl_b32 {s(S_T0)}, {s(S_T0)}, 2
        s_add_u32 {s(S_T0)}, {s(S_T0)}, {s(S_WAVE)}
        s_lshl_b32 {s(S_T0)}, {s(S_T0)}, 6
        v_lshlrev_b32 {v(t0)}, 4, {v(g)}
        v_lshl_add_u32 {v(t0)}, {v(n16)}, 11, {v(t0)}
        v_add_u32 {v(self.vPst)}, {s(S_T0)}, {v(t0)}
        s_lshr_b32 {s(S_T1)}, {s(S_ID)}, 2
        s_lshl_b32 {s(self.S_PO)}, {s(S_T1)}, 16
        s_add_u32 {s(self.S_PO)}, {s(self.S_PO)}, {WS_PB:#x}
        """)
        for sgm in range(2): self.prefill(sgm * 0x80000, 12)
        A("s_waitcnt vmcnt(0)")
    def stage(self):
        A = self.A; L, g, n16, rp, c, t0, t1, t2 = range(2, 10)
        srd(A, S_B, P_WO, 0x400000)
        A(f"""
        v_lshlrev_b32 {v(t0)}, 5, {v(g)}
        v_lshlrev_b32 {v(t1)}, 4, {v(n16)}
        v_xor_b32 {v(t0)}, {v(t0)}, {v(t1)}
        v_lshl_add_u32 v16, {v(g)}, 10, {v(t0)}
        v_xor_b32 v17, 128, v16
        s_lshr_b32 {s(S_T1)}, {s(S_ID)}, 2
        s_lshl_b32 {s(S_T1)}, {s(S_T1)}, 19
        s_and_b32 {s(S_T0)}, {s(S_ID)}, 3
        s_lshl_b32 {s(S_T0)}, {s(S_T0)}, 8
        s_add_u32 {s(S_T1)}, {s(S_T1)}, {s(S_T0)}
        s_lshl_b32 {s(S_T0)}, {s(S_WAVE)}, 15
        s_add_u32 {s(S_T1)}, {s(S_T1)}, {s(S_T0)}
        s_lshl_b32 {s(S_T2)}, {s(S_WAVE)}, 13
        """)
        for ch in range(4):
            for i in range(8):
                A(f"s_add_u32 m0, {s(S_T2)}, {ch*32768 + i*1024}")
                A(f"s_add_u32 {s(S_T0)}, {s(S_T1)}, {(128*ch + 4*i)*1024:#x}")
                A(f"buffer_load_dwordx4 {v(16 + (i & 1))}, {s(S_B,4)}, {s(S_T0)} offen lds")
    def prefill(self, add, z):
        A = self.A
        for m in range(2):
            A(f"s_add_u32 {s(S_T0)}, {s(self.S_PO)}, {add + m*32768:#x}")
            for n in range(2): A(f"buffer_store_dwordx4 {v(z,4)}, {v(self.vPst)}, {s(S_WS,4)}, {s(S_T0)} offen offset:{n*1024} sc1")
    def main(self):
        A = self.A; L, g, n16, rp, c, t0, t1, t2 = range(2, 10)
        A(f"""
        v_lshl_add_u32 {v(t0)}, {v(g)}, 2, {v(rp)}
        v_and_b32 {v(t1)}, 7, {v(t0)}
        v_lshlrev_b32 {v(t1)}, 5, {v(t1)}
        v_lshlrev_b32 {v(t2)}, 4, {v(c)}
        v_xor_b32 {v(t1)}, {v(t1)}, {v(t2)}
        s_lshl_b32 {s(S_T0)}, {s(S_WAVE)}, 6
        v_xor_b32 {v(t1)}, {s(S_T0)}, {v(t1)}
        v_lshl_add_u32 v16, {v(t0)}, 8, {v(t1)}
        v_add_u32 v17, 0x10000, v16
        s_waitcnt vmcnt(0)
        s_barrier
        """)
        for hh in range(4):
            for u in range(4):
                for n in range(2):
                    for b in range(2):
                        A(f"ds_read_b64_tr_b16 {a((n*16 + hh*4 + u)*4 + 2*b, 2)}, {v(17 if hh >= 2 else 16)} offset:{(hh % 2)*32768 + (32*u + 16*b)*256 + 8*n}")
        A(f"""
        s_lshr_b32 {s(S_T0)}, {s(S_ID)}, 2
        s_lshl_b32 {s(S_T0)}, {s(S_T0)}, 2
        s_add_u32 {s(S_T0)}, {s(S_T0)}, {s(S_WAVE)}
        s_lshl_b32 {s(self.S_OI)}, {s(S_T0)}, 13
        s_add_u32 {s(self.S_OI)}, {s(self.S_OI)}, {WS_O:#x}
        s_mov_b32 {s(self.S_SEG)}, 0
        s_lshl_b32 {s(S_T0)}, {s(S_WAVE)}, 13
        v_add_u32 v18, {s(S_T0)}, {v(self.vL16)}
        v_mov_b32 v19, {v(self.vL16)}
        s_waitcnt lgkmcnt(0)
        s_barrier
        """)
        fill_regs(A, 12, 4, -1)
        ST, FR, ACC = 20, 52, 68
        A("L_B_loop:")
        A.assume(vm=[], lg=[])
        lab = A.newlabel("L_bnp")
        A(f"s_cmp_ge_u32 {s(self.S_SEG)}, 62")
        A(f"s_cbranch_scc1 {lab}")
        self.prefill(2 * 0x80000, 12)
        A(f"{lab}:")
        A(f"s_add_u32 {s(S_T2)}, {s(self.S_OI)}, 4096")
        loads = [f"buffer_load_dwordx4 {v(ST + 4*i, 4)}, {v(self.vL16)}, {s(S_WS,4)}, {s(self.S_OI if i < 4 else S_T2)} offen offset:{(i % 4)*1024} sc1" for i in range(8)]
        poll(A, loads, list(range(ST, ST + 32)), list(range(FR, FR + 16)), tail_cond=f"s_cmp_ge_u32 {s(self.S_SEG)}, {TAILSEG}")
        for i in range(8): A(f"ds_write_b128 v18, {v(ST + 4*i, 4)} offset:{i*1024}")
        A("s_waitcnt lgkmcnt(0)")
        A("s_barrier")
        fr = lambda k, m: f"ds_read_b128 {v(FR + 8*(k % 2) + 4*m, 4)}, v19 offset:{(k // 4)*8192 + m*4096 + (k % 4)*1024}"
        for m in range(2): A(fr(0, m))
        for k in range(16):
            if k < 15:
                for m in range(2): A(fr(k + 1, m))
            for m in range(2):
                for n in range(2):
                    acc = ACC + (m*2 + n)*4
                    A(f"v_mfma_f32_16x16x32_bf16 {v(acc,4)}, {a((n*16 + k)*4, 4)}, {v(FR + 8*(k % 2) + 4*m, 4)}, {'0' if k == 0 else v(acc,4)}")
        A(f"s_add_u32 {s(S_T0)}, {s(self.S_PO)}, 32768")
        for m in range(2):
            for n in range(2):
                A(f"buffer_store_dwordx4 {v(ACC + (m*2 + n)*4, 4)}, {v(self.vPst)}, {s(S_WS,4)}, {s(self.S_PO if m == 0 else S_T0)} offen offset:{n*1024} sc1")
        A(f"""
        v_xor_b32 v18, 0x8000, v18
        v_xor_b32 v19, 0x8000, v19
        s_add_u32 {s(self.S_PO)}, {s(self.S_PO)}, 0x80000
        s_add_u32 {s(self.S_OI)}, {s(self.S_OI)}, 0x40000
        s_add_u32 {s(self.S_SEG)}, {s(self.S_SEG)}, 1
        s_cmp_lt_u32 {s(self.S_SEG)}, 64
        s_cbranch_scc1 L_B_loop
        """)

class RoleC(Role):
    S_SEG, S_HI, S_FO = 27, 28, 29
    vF = 10
    def start(self):
        A = self.A; L, g, n16, rp, c, t0, t1, t2 = range(2, 10)
        A(f"""
        v_lshlrev_b32 {v(self.vF)}, 3, {v(L)}
        s_sub_u32 {s(S_T2)}, {s(S_ID)}, 32
        s_lshl_b32 {s(S_T0)}, {s(S_T2)}, 1
        s_and_b32 {s(S_T1)}, {s(S_WAVE)}, 1
        s_add_u32 {s(S_T0)}, {s(S_T0)}, {s(S_T1)}
        s_lshr_b32 {s(S_T1)}, {s(S_WAVE)}, 1
        s_mul_i32 {s(S_T1)}, {s(S_T1)}, 86
        s_add_u32 {s(S_T0)}, {s(S_T0)}, {s(S_T1)}
        s_lshl_b32 {s(self.S_FO)}, {s(S_T0)}, 9
        s_add_u32 {s(self.S_FO)}, {s(self.S_FO)}, {WS_F:#x}
        buffer_store_dwordx2 v[12:13], {v(self.vF)}, {s(S_WS,4)}, {s(self.S_FO)} offen sc1
        s_waitcnt vmcnt(0)
        """)
    def stage(self):
        A = self.A; L, g, n16, rp, c, t0, t1, t2 = range(2, 10)
        srd(A, S_B, P_WG, 512*2752); srd(A, S_Cc, P_WU, 512*2752)
        A(f"""
        s_sub_u32 {s(S_T2)}, {s(S_ID)}, 32
        v_lshrrev_b32 {v(t0)}, 2, {v(L)}
        v_mul_u32_u24 {v(t0)}, 2752, {v(t0)}
        v_lshrrev_b32 {v(t1)}, 5, {v(L)}
        v_lshlrev_b32 {v(t1)}, 1, {v(t1)}
        v_xor_b32 {v(t1)}, {v(t1)}, {v(c)}
        v_lshl_add_u32 v16, {v(t1)}, 4, {v(t0)}
        s_lshl_b32 {s(S_T2)}, {s(S_T2)}, 6
        s_mul_i32 {s(S_T0)}, {s(S_WAVE)}, {128*2752}
        s_add_u32 {s(S_T2)}, {s(S_T2)}, {s(S_T0)}
        s_lshl_b32 {s(S_T1)}, {s(S_WAVE)}, 13
        """)
        for k, sr in enumerate((S_B, S_Cc)):
            for i in range(8):
                A(f"s_add_u32 m0, {s(S_T1)}, {k*32768 + i*1024}")
                A(f"s_add_u32 {s(S_T0)}, {s(S_T2)}, {16*i*2752:#x}")
                A(f"buffer_load_dwordx4 v16, {s(sr,4)}, {s(S_T0)} offen lds")
    def main(self):
        A = self.A; L, g, n16, rp, c, t0, t1, t2 = range(2, 10)
        A(f"""
        v_lshl_add_u32 {v(t0)}, {v(g)}, 3, {v(rp)}
        v_and_b32 {v(t1)}, 1, {v(g)}
        s_and_b32 {s(S_T0)}, {s(S_WAVE)}, 1
        v_xor_b32 {v(t1)}, {s(S_T0)}, {v(t1)}
        v_lshlrev_b32 {v(t1)}, 5, {v(t1)}
        v_lshl_or_b32 {v(t1)}, {v(c)}, 3, {v(t1)}
        v_lshl_add_u32 v16, {v(t0)}, 6, {v(t1)}
        v_lshlrev_b32 {v(t0)}, 4, {v(g)}
        v_lshl_add_u32 v17, {v(n16)}, 10, {v(t0)}
        s_lshr_b32 {s(S_T0)}, {s(S_WAVE)}, 1
        s_lshl_b32 {s(self.S_HI)}, {s(S_T0)}, 14
        s_add_u32 {s(self.S_HI)}, {s(self.S_HI)}, {WS_H2:#x}
        s_mov_b32 {s(self.S_SEG)}, 0
        s_waitcnt vmcnt(0)
        s_barrier
        """)
        for k in range(2):
            for ks in range(16):
                for b in range(2):
                    A(f"ds_read_b64_tr_b16 {a((k*16 + ks)*4 + 2*b, 2)}, v16 offset:{k*32768 + (32*ks + 4*b)*64}")
        fill_regs(A, 12, 2, -1)
        H, G, U, T = 20, 84, 88, 92
        A("L_C_loop:")
        A.assume(vm=[], lg=[(a(0, 128), None)])
        lab = A.newlabel("L_cnp")
        A(f"s_cmp_ge_u32 {s(self.S_SEG)}, 63")
        A(f"s_cbranch_scc1 {lab}")
        A(f"s_add_u32 {s(S_T0)}, {s(self.S_FO)}, {F_SEG}")
        A(f"buffer_store_dwordx2 v[12:13], {v(self.vF)}, {s(S_WS,4)}, {s(S_T0)} offen sc1")
        A(f"{lab}:")
        loads = [f"buffer_load_dwordx4 {v(H + 4*ks, 4)}, v17, {s(S_WS,4)}, {s(self.S_HI)} offen offset:{ks*64} sc1" for ks in range(16)]
        poll(A, loads, list(range(H, H + 64)), list(range(92, 124)), tail_cond=f"s_cmp_ge_u32 {s(self.S_SEG)}, {TAILSEG}")
        for ks in range(16):
            for k, acc in enumerate((G, U)):
                A(f"v_mfma_f32_16x16x32_bf16 {v(acc,4)}, {a((k*16 + ks)*4, 4)}, {v(H + 4*ks, 4)}, {'0' if ks == 0 else v(acc,4)}")
        A(f"s_add_u32 {s(self.S_HI)}, {s(self.S_HI)}, 32768")
        A(f"s_add_u32 {s(self.S_SEG)}, {s(self.S_SEG)}, 1")
        rnd_list(A, list(range(G, G + 8)), list(range(T, T + 4)))
        for r in range(4): A(f"v_mul_f32 {v(T + r)}, {v(G + r)}, {v(G + r)}")
        A(f"v_mov_b32 {v(T + 4)}, 0xc0135761")
        A(f"s_mov_b32 {s(S_T1)}, 0xbdd2d3e8")
        for r in range(4): A(f"v_fma_f32 {v(T + r)}, {v(T + r)}, {s(S_T1)}, {v(T + 4)}")
        for r in range(4): A(f"v_mul_f32 {v(T + r)}, {v(T + r)}, {v(G + r)}")
        for r in range(4): A(f"v_exp_f32 {v(T + r)}, {v(T + r)}")
        for r in range(4): A(f"v_add_f32 {v(T + r)}, 1.0, {v(T + r)}")
        for r in range(4): A(f"v_rcp_f32 {v(T + r)}, {v(T + r)}")
        for r in range(4): A(f"v_mul_f32 {v(G + r)}, {v(G + r)}, {v(T + r)}")
        rnd_list(A, list(range(G, G + 4)), [T, T + 1])
        for r in range(4): A(f"v_mul_f32 {v(G + r)}, {v(G + r)}, {v(U + r)}")
        for r in range(2):
            A(f"v_cvt_pk_bf16_f32 {v(T + r)}, {v(G + 2*r)}, {v(G + 2*r + 1)}")
        for r in range(2): A(f"v_min_u32 {v(T + r)}, -2, {v(T + r)}")
        A(f"buffer_store_dwordx2 {v(T,2)}, {v(self.vF)}, {s(S_WS,4)}, {s(self.S_FO)} offen sc1")
        A(f"s_add_u32 {s(self.S_FO)}, {s(self.S_FO)}, {F_SEG}")
        A(f"s_cmp_lt_u32 {s(self.S_SEG)}, 64")
        A("s_cbranch_scc1 L_C_loop")

class RoleD(Role):
    S_SEG, S_FI, S_XO, S_FI2 = 27, 28, 29, 30
    RED = 98304
    def start(self):
        self.A("s_waitcnt vmcnt(0)")
    def stage(self):
        A = self.A; L, g, n16, rp, c, t0, t1, t2 = range(2, 10)
        srd(A, S_B, P_WD, 1376*1024)
        A(f"""
        v_lshrrev_b32 {v(t0)}, 2, {v(L)}
        v_lshlrev_b32 {v(t1)}, 4, {v(c)}
        v_lshl_add_u32 v16, {v(t0)}, 10, {v(t1)}
        s_sub_u32 {s(S_T2)}, {s(S_ID)}, 75
        s_lshr_b32 {s(S_T2)}, {s(S_T2)}, 1
        s_lshl_b32 {s(S_T2)}, {s(S_T2)}, 6
        s_lshl_b32 {s(S_T0)}, {s(S_WAVE)}, 14
        s_add_u32 {s(S_T2)}, {s(S_T2)}, {s(S_T0)}
        s_lshl_b32 {s(S_T1)}, {s(S_WAVE)}, 10
        """)
        for i in range(22):
            A(f"s_add_u32 m0, {s(S_T1)}, {i*4096}")
            A(f"s_add_u32 {s(S_T0)}, {s(S_T2)}, {i*65536:#x}")
            A(f"buffer_load_dwordx4 v16, {s(S_B,4)}, {s(S_T0)} offen lds")
    def main(self):
        A = self.A; L, g, n16, rp, c, t0, t1, t2 = range(2, 10)
        srd(A, S_B, P_OUT, 0x200000)
        GB = 128
        A(f"""
        v_lshl_add_u32 {v(t0)}, {v(g)}, 2, {v(rp)}
        v_lshlrev_b32 {v(t1)}, 4, {v(c)}
        v_lshl_add_u32 {v(t0)}, {v(t0)}, 6, {v(t1)}
        s_mul_i32 {s(S_T0)}, {s(S_WAVE)}, {11*2048}
        v_add_u32 v16, {s(S_T0)}, {v(t0)}
        v_lshlrev_b32 v10, 3, {v(L)}
        s_sub_u32 {s(S_T2)}, {s(S_ID)}, 75
        s_and_b32 {s(S_T0)}, {s(S_T2)}, 1
        s_lshr_b32 {s(S_T2)}, {s(S_T2)}, 1
        ; f fragments: (m*86 + 22w)*512
        s_mul_i32 {s(S_T1)}, {s(S_T0)}, 86
        s_mul_i32 {s(self.S_FI)}, {s(S_WAVE)}, 22
        s_add_u32 {s(self.S_FI)}, {s(self.S_FI)}, {s(S_T1)}
        s_lshl_b32 {s(self.S_FI)}, {s(self.S_FI)}, 9
        s_add_u32 {s(self.S_FI)}, {s(self.S_FI)}, {WS_F:#x}
        s_lshl_b32 {s(self.S_XO)}, {s(S_T0)}, 14
        s_lshl_b32 {s(S_T1)}, {s(S_T2)}, 6
        s_add_u32 {s(self.S_XO)}, {s(self.S_XO)}, {s(S_T1)}
        v_lshlrev_b32 {v(t0)}, 4, {v(g)}
        v_lshl_add_u32 v17, {v(n16)}, 10, {v(t0)}
        v_lshlrev_b32 {v(t0)}, 5, {v(g)}
        s_lshl_b32 {s(S_T1)}, {s(S_T2)}, 7
        v_add_u32 {v(t0)}, {s(S_T1)}, {v(t0)}
        s_lshl_b32 {s(S_T0)}, {s(S_WAVE)}, 11
        s_add_u32 {s(S_T0)}, {s(S_T0)}, {self.RED}
        v_add_u32 v18, {s(S_T0)}, {v(self.vL16)}
        v_add_u32 v19, {self.RED}, {v(self.vL16)}
        s_mov_b32 {s(self.S_SEG)}, 0
        """)
        load_mod(A, GB, 5, t0, 120)
        A("s_barrier")
        for i in range(11):
            for n in range(2):
                for b in range(2):
                    A(f"ds_read_b64_tr_b16 {a((n*11 + i)*4 + 2*b, 2)}, v16 offset:{i*2048 + b*1024 + 8*n}")
        F, ACC, T = 20, 64, 72
        fill_regs(A, F + 40, 4, 0)
        A("L_D_loop:")
        A.assume(vm=[], lg=[(a(0, 88), None)])
        A(f"s_add_u32 {s(self.S_FI2)}, {s(self.S_FI)}, 4096")
        A(f"s_add_u32 {s(S_T2)}, {s(self.S_FI)}, 8192")
        ld = lambda j: f"buffer_load_dwordx2 {v(F + 2*j, 2)}, v10, {s(S_WS,4)}, {s((self.S_FI, self.S_FI2, S_T2)[j // 8])} offen offset:{(j % 8)*512} sc1"
        tc = f"s_cmp_ge_u32 {s(self.S_SEG)}, {TAILSEG}"
        A(f"s_cmp_eq_u32 {s(S_WAVE)}, 3")
        A("s_cbranch_scc1 L_D_w3")
        poll(A, [ld(j) for j in range(22)], list(range(F, F + 44)), list(range(T, T + 22)), tail_cond=tc)
        A("s_branch L_D_mm")
        A("L_D_w3:")
        poll(A, [ld(j) for j in range(20)], list(range(F, F + 40)), list(range(T, T + 22)), tail_cond=tc)
        A("L_D_mm:")
        for i in range(11):
            for n in range(2):
                A(f"v_mfma_f32_16x16x32_bf16 {v(ACC + 4*n, 4)}, {a((n*11 + i)*4, 4)}, {v(F + 4*i, 4)}, {'0' if i == 0 else v(ACC + 4*n, 4)}")
        A(f"s_and_b32 {s(S_T0)}, {s(self.S_SEG)}, 3")
        for n in range(2): A(f"ds_write_b128 v18, {v(ACC + 4*n, 4)} offset:{n*1024}")
        A(f"s_cmp_lg_u32 {s(S_T0)}, {s(S_WAVE)}")
        A("s_cbranch_scc1 L_D_nofin")
        A(f"s_add_u32 {s(S_T1)}, {s(self.S_XO)}, {WS_X1:#x}")
        poll(A, [f"buffer_load_dwordx4 {v(T, 4)}, v17, {s(S_WS,4)}, {s(S_T1)} offen sc1"], list(range(T, T + 4)), [T + 4, T + 5], tail_cond="s_cmp_eq_u32 0, 0")
        X = T + 8
        unpack(A, X, T, 4)
        A("s_waitcnt lgkmcnt(0)")
        A("s_barrier")
        P = T + 16
        for k in range(8): A(f"ds_read_b128 {v(P + 4*k, 4)}, v19 offset:{k*1024}")
        for k in (0, 16):
            for i in range(0, 8, 2): A(f"v_pk_add_f32 {v(P + k + i, 2)}, {v(P + k + i, 2)}, {v(P + k + 8 + i, 2)}")
        for i in range(0, 8, 2): A(f"v_pk_add_f32 {v(P + i, 2)}, {v(P + i, 2)}, {v(P + 16 + i, 2)}")
        rnd_list(A, list(range(P, P + 8)), list(range(T, T + 4)))
        for i in range(0, 8, 2): A(f"v_pk_mul_f32 {v(P + i, 2)}, {v(P + i, 2)}, {v(GB + i, 2)}")
        rnd_list(A, list(range(P, P + 8)), list(range(T, T + 4)))
        for i in range(0, 8, 2): A(f"v_pk_add_f32 {v(P + i, 2)}, {v(P + i, 2)}, {v(X + i, 2)}")
        for i in range(4): A(f"v_cvt_pk_bf16_f32 {v(T + i)}, {v(P + 2*i)}, {v(P + 2*i + 1)}")
        A(f"buffer_store_dwordx4 {v(T, 4)}, v17, {s(S_B,4)}, {s(self.S_XO)} offen")
        A("s_branch L_D_next")
        A("L_D_nofin:")
        A("s_waitcnt lgkmcnt(0)")
        A("s_barrier")
        A(f"""
L_D_next:
        v_xor_b32 v18, 0x2000, v18
        v_xor_b32 v19, 0x2000, v19
        s_add_u32 {s(self.S_FI)}, {s(self.S_FI)}, {F_SEG}
        s_add_u32 {s(self.S_XO)}, {s(self.S_XO)}, 32768
        s_add_u32 {s(self.S_SEG)}, {s(self.S_SEG)}, 1
        s_cmp_lt_u32 {s(self.S_SEG)}, 64
        s_cbranch_scc1 L_D_loop
        """)

class RoleR(Role):
    S_SEG, S_ROW, S_PI = 27, 28, 29
    def start(self):
        A = self.A
        A(f"""
        s_sub_u32 {s(S_T0)}, {s(S_ID)}, 107
        s_lshl_b32 {s(S_T0)}, {s(S_T0)}, 2
        s_add_u32 {s(S_T0)}, {s(S_T0)}, {s(S_WAVE)}
        s_lshr_b32 {s(self.S_SEG)}, {s(S_T0)}, 5
        s_lshl_b32 {s(self.S_ROW)}, {s(S_T0)}, 10
        s_lshl_b32 {s(self.S_PI)}, {s(self.S_SEG)}, 19
        s_and_b32 {s(S_T0)}, {s(S_T0)}, 31
        s_lshl_b32 {s(S_T0)}, {s(S_T0)}, 11
        s_add_u32 {s(self.S_PI)}, {s(self.S_PI)}, {s(S_T0)}
        s_add_u32 {s(self.S_PI)}, {s(self.S_PI)}, {WS_PB:#x}
        """)
        self.prefill(0)
        A("s_waitcnt vmcnt(0)")
    def stage(self): pass
    def prefill(self, add):
        A = self.A
        for base in (WS_X1, WS_H2):
            A(f"s_add_u32 {s(S_T0)}, {s(self.S_ROW)}, {base + add:#x}")
            A(f"buffer_store_dwordx4 v[12:15], {v(self.vL16)}, {s(S_WS,4)}, {s(S_T0)} offen sc1")
    def main(self):
        A = self.A; L, g, n16, rp, c, t0, t1, t2 = range(2, 10)
        srd(A, S_A, P_X, 0x200000)
        GA, SB, CB = 96, 104, 112
        A(f"v_lshlrev_b32 {v(t0)}, 5, {v(L)}")
        load_mod(A, GA, 2, t0, 120); load_mod(A, SB, 3, t0, 120); load_mod(A, CB, 4, t0, 120)
        for i in range(8): A(f"v_add_f32 {v(CB + i)}, 1.0, {v(CB + i)}")
        rnd_list(A, list(range(CB, CB + 8)), list(range(120, 124)))
        fill_regs(A, 12, 4, -1)
        P, X, T = 128, 20, 28
        A("L_R_loop:")
        A.assume(vm=[], lg=[])
        lab = A.newlabel("L_rnp")
        A(f"s_cmp_ge_u32 {s(self.S_SEG)}, 62")
        A(f"s_cbranch_scc1 {lab}")
        self.prefill(65536)
        A(f"{lab}:")
        A(f"buffer_load_dwordx4 {v(T, 4)}, {v(self.vL16)}, {s(S_A,4)}, {s(self.S_ROW)} offen")
        for k in range(1, 8): A(f"s_add_u32 {s(80 + k)}, {s(self.S_PI)}, {k*65536:#x}")
        unpack(A, X, T, 4)
        loads = [f"buffer_load_dwordx4 {v(P + 8*k + 4*b, 4)}, {v(self.vL16)}, {s(S_WS,4)}, {s(self.S_PI if k == 0 else 80 + k)} offen offset:{b*1024} sc1" for k in range(8) for b in range(2)]
        poll(A, loads, list(range(P, P + 64)), list(range(40, 72)), tail_cond=f"s_cmp_ge_u32 {s(self.S_SEG)}, {TAILSEG}")
        for st in (32, 16, 8):
            for i in range(0, st, 2): A(f"v_pk_add_f32 {v(P + i, 2)}, {v(P + i, 2)}, {v(P + st + i, 2)}")
        ps = list(range(P, P + 8)); ts = list(range(T, T + 4))
        rnd_list(A, ps, ts)
        for i in range(0, 8, 2): A(f"v_pk_mul_f32 {v(P + i, 2)}, {v(P + i, 2)}, {v(GA + i, 2)}")
        rnd_list(A, ps, ts)
        for i in range(0, 8, 2): A(f"v_pk_add_f32 {v(X + i, 2)}, {v(X + i, 2)}, {v(P + i, 2)}")
        rnd_list(A, list(range(X, X + 8)), ts)
        for i in range(4): A(f"v_min_u32 {v(40 + i)}, -2, {v(T + i)}")
        A(f"s_add_u32 {s(S_T0)}, {s(self.S_ROW)}, {WS_X1:#x}")
        A(f"buffer_store_dwordx4 v[40:43], {v(self.vL16)}, {s(S_WS,4)}, {s(S_T0)} offen sc1")
        ln_stats(A, [X], [44], [45], [48])
        ln_apply(A, X, 44, 45, CB, SB, 60, T)
        A(f"s_add_u32 {s(S_T0)}, {s(self.S_ROW)}, {WS_H2:#x}")
        A(f"buffer_store_dwordx4 v[60:63], {v(self.vL16)}, {s(S_WS,4)}, {s(S_T0)} offen sc1")
        A(f"""
        s_add_u32 {s(self.S_ROW)}, {s(self.S_ROW)}, 65536
        s_add_u32 {s(self.S_PI)}, {s(self.S_PI)}, 0x100000
        s_add_u32 {s(self.S_SEG)}, {s(self.S_SEG)}, 2
        s_cmp_lt_u32 {s(self.S_SEG)}, 64
        s_cbranch_scc1 L_R_loop
        """)
```

```python
import sys, json
from common import *
import team

HEADER = open("adaLN_cond__memory_aug_recurrent_mem_tr__geglu_ffn__prompt.s.ref").read().split("; Override launch")[0]

def prologue(A, cfg):
    A(f"""
    s_cmp_ge_u32 s2, 256
    s_cbranch_scc1 L_abort
    s_load_dwordx16 s[32:47], s[0:1], 0
    s_load_dwordx16 s[48:63], s[0:1], 64
    s_getreg_b32 {s(S_XCC)}, hwreg(HW_REG_XCC_ID, 0, 4)
    v_lshrrev_b32 v1, 6, v0
    s_and_b32 {s(S_XCC)}, {s(S_XCC)}, 7
    v_readfirstlane_b32 {s(S_WAVE)}, v1
    s_mov_b32 {s(S_SPIN)}, 0
    s_waitcnt lgkmcnt(0)
    """)
    srd(A, S_WS, P_WS, WS_SIZE)
    srd(A, S_DBG, P_DBG, 256)
    A(f"""
    s_lshl_b32 s23, {s(S_XCC)}, 4
    s_add_u32 s23, s23, {DBG_WTICKET - 16}
    s_cmp_eq_u32 {s(S_XCC)}, 0
    s_cselect_b32 s23, {DBG_TEAM_TICKET}, s23
    v_mov_b32 v3, {LDS_TICKET}
    s_cmp_lg_u32 {s(S_WAVE)}, 0
    s_cbranch_scc1 L_tk_wait
    v_mov_b32 v1, s23
    v_mov_b32 v2, 1
    s_mov_b64 exec, 1
    buffer_atomic_add v2, v1, {s(S_DBG,4)}, 0 offen sc0
    s_waitcnt vmcnt(0)
    ds_write_b32 v3, v2
    s_waitcnt lgkmcnt(0)
    s_mov_b64 exec, -1
L_tk_wait:
    s_barrier
    ds_read_b32 v2, v3
    s_waitcnt lgkmcnt(0)
    v_readfirstlane_b32 {s(S_TICK)}, v2
    s_barrier
    s_cmp_ge_u32 {s(S_TICK)}, 32
    s_cbranch_scc1 L_abort
    s_cmp_eq_u32 {s(S_XCC)}, 0
    s_cbranch_scc1 L_team
    """)

def build(cfg):
    A = Asm()
    prologue(A, cfg)
    if cfg.get("workers", True):
        import workers
        workers.gen_workers(A, cfg)
    else:
        A("s_endpgm")
    team.gen_team(A, cfg)
    A("L_abort:")
    A("s_endpgm")
    out = HEADER + f"""; @launch grid=(256,1,1) block=(256,1,1) lds={LDS_BYTES}
.amdgcn_target "amdgcn-amd-amdhsa--gfx950"
.text
.globl {KNAME}
.p2align 8
.type {KNAME},@function
{KNAME}:
""" + A.text() + f""".section .rodata,"a"
.p2align 6
.amdhsa_kernel {KNAME}
  .amdhsa_next_free_vgpr 512
  .amdhsa_next_free_sgpr 102
  .amdhsa_accum_offset 256
  .amdhsa_group_segment_fixed_size 0
  .amdhsa_kernarg_size 128
  .amdhsa_user_sgpr_count 2
  .amdhsa_user_sgpr_kernarg_segment_ptr 1
  .amdhsa_system_sgpr_workgroup_id_x 1
  .amdhsa_float_denorm_mode_32 3
.end_amdhsa_kernel
"""
    return out, A

if __name__ == "__main__":
    cfg = json.loads(sys.argv[2]) if len(sys.argv) > 2 else {}
    out, A = build(cfg)
    open(sys.argv[1], "w").write(out)
    print("lines", len(A.lines), "nops inserted", A.nops_inserted)
```
